```python
import torch

def _softmax(x, axis=-1):
    return torch.softmax(x, dim=axis)
def _gelu(x):
    return torch.nn.functional.gelu(x, approximate="tanh")
def _silu(x):
    return torch.nn.functional.silu(x)
def _sigmoid(x):
    return torch.sigmoid(x)
def _layernorm(x, axis=-1, eps=1e-5):
    m = x.mean(dim=axis, keepdim=True)
    v = x.var(dim=axis, keepdim=True, unbiased=False)
    return (x - m) / torch.sqrt(v + eps)
def _scatter_add(tgt, idx, src, axis=0):
    return tgt.clone().index_add_(axis, idx, src)
def _segment_sum(src, seg, n):
    out = torch.zeros((n,) + src.shape[1:], dtype=src.dtype)
    return out.index_add_(0, seg, src)
def _pad(x, pw):
    flat = tuple(v for pair in reversed(pw) for v in pair)
    return torch.nn.functional.pad(x, flat)

kernel_name = 'sequential_preLN__gqa_block_cached__swiglu_ffn__decode'

def setup_inputs():

    _w = (lambda a: (lambda t: t.to(torch.bfloat16) if t.is_floating_point() else t)(torch.as_tensor(a)))
    def _A_setup():
        B, Sq, D = 2, 1, 512
        Hq, Hkv, Sk, Dh = 32, 8, 32768, 128
        assert Hq % Hkv == 0, (Hq, Hkv)
        return {
            "x": _w((lambda *s: torch.randn(*s, dtype=torch.bfloat16) * 0.05)(B, Sq, D)),
            "k_cache": _w((lambda *s: torch.randn(*s, dtype=torch.bfloat16) * 3.2)(B, Hkv, Sk, Dh)),
            "v_cache": _w((lambda *s: torch.randn(*s, dtype=torch.bfloat16) * 0.4)(B, Hkv, Sk, Dh)),
            "wq": _w((lambda *s: torch.randn(*s, dtype=torch.bfloat16) * 3.2)(D, Hq * Dh) * (D ** -0.5)),
            "wo": _w((lambda *s: torch.randn(*s, dtype=torch.bfloat16) * 0.4)(Hq * Dh, D) * ((Hq * Dh) ** -0.5)),
        }
    _A_in = _A_setup()

    def _B_setup():
        B, S, D, F = 2, 1, 512, 1792
        return {
            "x": _w((lambda *s: torch.randn(*s, dtype=torch.bfloat16) * 0.05)(B, S, D)),
            "w_gate": _w((lambda *s: torch.randn(*s, dtype=torch.bfloat16) * 0.05)(D, F)),
            "w_up": _w((lambda *s: torch.randn(*s, dtype=torch.bfloat16) * 0.05)(D, F)),
            "w_down": _w((lambda *s: torch.randn(*s, dtype=torch.bfloat16) * 0.05)(F, D)),
        }
    _B_in = _B_setup()

    return {
        "A_x": _A_in["x"],
        "A_k_cache": _A_in["k_cache"],
        "A_v_cache": _A_in["v_cache"],
        "A_wq": _A_in["wq"],
        "A_wo": _A_in["wo"],
        "B_x": _B_in["x"],
        "B_w_gate": _B_in["w_gate"],
        "B_w_up": _B_in["w_up"],
        "B_w_down": _B_in["w_down"],
    }

def reference(A_x, A_k_cache, A_v_cache, A_wq, A_wo, B_x, B_w_gate, B_w_up, B_w_down):
    def _A_ref(x, k_cache, v_cache, wq, wo):
        B, Sq, D = x.shape
        Hq, Dh = 32, 128
        Hkv = k_cache.shape[1]
        rep = Hq // Hkv
        q = (lambda x, *d: x.permute(*d))((x @ wq).reshape(B, Sq, Hq, Dh), 0, 2, 1, 3)
        k = (lambda x, n, axis: torch.repeat_interleave(x, n, dim=axis))(k_cache, rep, axis=1)
        v = (lambda x, n, axis: torch.repeat_interleave(x, n, dim=axis))(v_cache, rep, axis=1)
        scores = torch.einsum("bhqd,bhkd->bhqk", q, k) * (Dh ** -0.5)
        p = _softmax(scores, axis=-1)
        o = torch.einsum("bhqk,bhkd->bhqd", p, v)
        return (lambda x, *d: x.permute(*d))(o, 0, 2, 1, 3).reshape(B, Sq, Hq * Dh) @ wo

    def _B_ref(x, w_gate, w_up, w_down):
        g = _silu(x @ w_gate)
        u = x @ w_up
        return (g * u) @ w_down

    x = A_x
    h = x + _A_ref(_layernorm(x, axis=-1), A_k_cache, A_v_cache, A_wq, A_wo)
    h2 = h + _B_ref(_layernorm(h, axis=-1), B_w_gate, B_w_up, B_w_down)
    return h2
```

```python
NAME = "sequential_preLN__gqa_block_cached__swiglu_ffn__decode"

HEADER = """; Kernarg layout (96 bytes, ptrs only, base s[0:1]):
"""

class Asm:
    def __init__(self):
        self.lines = []
        self.nlabel = 0
    def __call__(self, s):
        for l in s.strip("\n").split("\n"):
            self.lines.append("    " + l.strip())
    def label(self, name):
        self.lines.append(name + ":")
    def newlabel(self, base="L"):
        self.nlabel += 1
        return f"{base}_{self.nlabel}"
    def raw(self, s):
        self.lines.append(s)
    def text(self):
        return "\n".join(self.lines) + "\n"

def vr(a, n):
    return f"v[{a}:{a+n-1}]"
def sr(a, n):
    return f"s[{a}:{a+n-1}]"

def kernel_begin(a, name):
    a.raw(f".globl {name}")
    a.raw(".p2align 8")
    a.raw(f".type {name},@function")
    a.label(name)

def kernel_desc(name, nvgpr, nsgpr=102, accum=None):
    acc = accum if accum is not None else ((nvgpr + 3) // 4) * 4
    return f""".p2align 6
.amdhsa_kernel {name}
  .amdhsa_next_free_vgpr {nvgpr}
  .amdhsa_next_free_sgpr {nsgpr}
  .amdhsa_accum_offset {acc}
  .amdhsa_group_segment_fixed_size 0
  .amdhsa_kernarg_size 96
  .amdhsa_user_sgpr_count 2
  .amdhsa_user_sgpr_kernarg_segment_ptr 1
  .amdhsa_system_sgpr_workgroup_id_x 1
.end_amdhsa_kernel
"""

P_X, P_K, P_V, P_WQ, P_WO, P_BX, P_WG, P_WU, P_WD, P_OUT, P_DBG, P_WS = 16, 18, 20, 22, 24, 26, 28, 30, 32, 34, 36, 38

def load_ptrs(a):
    a("s_load_dwordx16 s[16:31], s[0:1], 0")
    a("s_load_dwordx8 s[32:39], s[0:1], 64")

def make_srd(a, d, ptr, nbytes, off_lo=None):
    if off_lo is None:
        a(f"s_mov_b32 s{d}, s{ptr}")
        a(f"s_and_b32 s{d+1}, s{ptr+1}, 0xffff")
    else:
        a(f"s_add_u32 s{d}, s{ptr}, s{off_lo}")
        a(f"s_addc_u32 s{d+1}, s{ptr+1}, 0")
        a(f"s_and_b32 s{d+1}, s{d+1}, 0xffff")
    a(f"s_mov_b32 s{d+2}, {nbytes:#x}")
    a(f"s_mov_b32 s{d+3}, 0x00020000")

LOG2E = 0x3FB8AA3B
SCALE = 0x3DB504F3
EPS = 0x3727C5AC
INV512 = 0x3B000000

def reduce_row16_add(a, v, op="add"):
    for ctl in ("quad_perm:[1,0,3,2]", "quad_perm:[2,3,0,1]", "row_half_mirror", "row_mirror"):
        a("s_nop 1")
        a(f"v_{op}_f32_dpp v{v}, v{v}, v{v} {ctl} row_mask:0xf bank_mask:0xf")

def xrow16(a, v, t, op="add"):
    a(f"v_mov_b32 v{t}, v{v}")
    a("s_nop 1")
    a(f"v_permlane16_swap_b32 v{v}, v{t}")
    a(f"v_{op}_f32 v{v}, v{v}, v{t}")

def xhalf32(a, v, t, op="add"):
    a(f"v_mov_b32 v{t}, v{v}")
    a("s_nop 1")
    a(f"v_permlane32_swap_b32 v{v}, v{t}")
    a(f"v_{op}_f32 v{v}, v{v}, v{t}")

def ln_stats(a, X, F, vm, vr_, t0, t1, smask):
    for j in range(8):
        a(f"v_lshlrev_b32 v{F+2*j}, 16, v{X+j}")
        a(f"v_and_b32 v{F+2*j+1}, 0xffff0000, v{X+j}")
    a(f"v_add_f32 v{t0}, v{F}, v{F+1}")
    a(f"v_add_f32 v{t1}, v{F+2}, v{F+3}")
    for j in range(4, 16, 2):
        a(f"v_add_f32 v{t0}, v{t0}, v{F+j}")
        a(f"v_add_f32 v{t1}, v{t1}, v{F+j+1}")
    a(f"v_add_f32 v{vm}, v{t0}, v{t1}")
    reduce_row16_add(a, vm)
    xrow16(a, vm, t0)
    a(f"v_mul_f32 v{vm}, {INV512:#x}, v{vm}")
    for j in range(16):
        a(f"v_sub_f32 v{F+j}, v{F+j}, v{vm}")
    a(f"v_mul_f32 v{t0}, v{F}, v{F}")
    a(f"v_mul_f32 v{t1}, v{F+1}, v{F+1}")
    for j in range(2, 16, 2):
        a(f"v_fmac_f32 v{t0}, v{F+j}, v{F+j}")
        a(f"v_fmac_f32 v{t1}, v{F+j+1}, v{F+j+1}")
    a(f"v_add_f32 v{vr_}, v{t0}, v{t1}")
    reduce_row16_add(a, vr_)
    xrow16(a, vr_, t0)
    a(f"v_mul_f32 v{vr_}, {INV512:#x}, v{vr_}")
    a(f"v_cvt_pk_bf16_f32 v{vm}, 0, v{vm}")
    a(f"v_cvt_pk_bf16_f32 v{vr_}, 0, v{vr_}")
    a(f"v_add_f32 v{vr_}, {EPS:#x}, v{vr_}")
    a(f"v_cvt_pk_bf16_f32 v{vr_}, 0, v{vr_}")
    a(f"v_sqrt_f32 v{vr_}, v{vr_}")
    a("s_nop 0")
    a(f"v_cvt_pk_bf16_f32 v{vr_}, 0, v{vr_}")
    a(f"v_rcp_f32 v{vr_}, v{vr_}")
    a(f"v_mov_b32 v{t0}, v{vm}")
    a(f"v_mov_b32 v{t1}, v{vr_}")
    a("s_nop 1")
    a(f"v_permlane32_swap_b32 v{vm}, v{t0}")
    a(f"v_permlane32_swap_b32 v{vr_}, v{t1}")
    a("s_nop 1")
    a(f"v_cndmask_b32 v{vm}, v{vm}, v{t0}, s[{smask}:{smask+1}]")
    a(f"v_cndmask_b32 v{vr_}, v{vr_}, v{t1}, s[{smask}:{smask+1}]")

def ln_apply(a, Y, n, vm, vr_, t0, t1):
    for j in range(n):
        a(f"v_lshlrev_b32 v{t0}, 16, v{Y+j}")
        a(f"v_and_b32 v{t1}, 0xffff0000, v{Y+j}")
        a(f"v_sub_f32 v{t0}, v{t0}, v{vm}")
        a(f"v_sub_f32 v{t1}, v{t1}, v{vm}")
        a(f"v_cvt_pk_bf16_f32 v{t0}, 0, v{t0}")
        a(f"v_cvt_pk_bf16_f32 v{t1}, 0, v{t1}")
        a(f"v_mul_f32 v{t0}, v{t0}, v{vr_}")
        a(f"v_mul_f32 v{t1}, v{t1}, v{vr_}")
        a(f"v_cvt_pk_bf16_f32 v{Y+j}, v{t0}, v{t1}")

def make_sels(a, SEL, vI, t0, t1, s0):
    for sh, (lo, hi) in enumerate(((0x0C0C0100, 0x01000C0C), (0x0C0C0302, 0x03020C0C))):
        a(f"v_and_b32 v{t0}, 1, v{vI}")
        a(f"v_cmp_eq_u32 vcc, 1, v{t0}")
        a(f"v_mov_b32 v{t0}, {lo:#x}")
        a(f"v_mov_b32 v{t1}, {hi:#x}")
        a(f"v_cndmask_b32 v{t1}, v{t0}, v{t1}, vcc")
        a(f"v_bfe_u32 v{t0}, v{vI}, 1, 2")
        for j in range(4):
            a(f"v_cmp_eq_u32 vcc, {j}, v{t0}")
            a(f"v_mov_b32 v{SEL+sh*4+j}, 0x0c0c0c0c")
            a("s_nop 0")
            a(f"v_cndmask_b32 v{SEL+sh*4+j}, v{SEL+sh*4+j}, v{t1}, vcc")

def gemv_mfma(a, Y, nfrag, W, SEL, A0, A1, ACC, wait=None):
    def perm(t):
        A = A0 if t % 2 == 0 else A1
        for j in range(4):
            a(f"v_perm_b32 v{A+j}, v{Y+t//2}, v{Y+t//2}, v{SEL+(t%2)*4+j}")
    perm(0)
    for t in range(nfrag):
        if t + 1 < nfrag:
            perm(t + 1)
        else:
            a("s_nop 1")
        if wait: wait(t)
        A = A0 if t % 2 == 0 else A1
        c = "0" if t == 0 else vr(ACC, 4)
        a(f"v_mfma_f32_16x16x32_bf16 {vr(ACC,4)}, {vr(A,4)}, {vr(W+4*t,4)}, {c}")
```

```python
import sys, re
from gen_common import *

WS_EPOCH = 0x0
WS_FLAG = 0x1000
WS_QP = 0x100000
WS_POOL = 0x18000
WS_QG = 0x2000
WS_AM = 0xA000
WS_WP = 0xC000
WS_DP = 0x20000
WS_AO = 0x80000
WS_END = 0x180000
STAMP = 0x200000
TAGK = 0x9E3779B9

sWG, sWV, sL2E, sSC, sMK = 2, 3, 4, 5, 6
sHKV, sB, sS, sJ = 8, 9, 10, 11
sOF0, sOF1 = 14, 15
RK, RV, RW1, RWS, RW2, RWD, RX, ROUT = 40, 44, 48, 52, 56, 60, 64, 68
sTAG, sROLE, sDRY, sTO, sIDX = 72, 73, 74, 75, 76
sM = 78
sST = 88
sE = 16
vLane, vG, vI = 1, 2, 3
vKo, vVo = 5, 6
Q = 8; O0, O1 = 24, 28; AW = 32; S = 52; R = 56
vC, vL, vAa, vAo, vT, vU, vM0, vM1, vCn = 60, 61, 62, 63, 64, 65, 66, 67, 68
vTk, vTa, vT1 = 69, 70, 71
RING = 72
W = 136; WD = 200; SEL = 232; FL = 240
NVGPR = 248
D = 2
NW = 8
LQ = 0
LO = 1024; LC = LO + NW * 2048; LL = LC + 128
LX = 1024
LR = 3072
LA = 11264
LCNT = LL + 128
LQF = LCNT + 4
LCH = LCNT + 16
LDS_BYTES = LCH + 512
EMPTY = 0xFFFFFFFE
INVALID = 0x40000000
sSLAB, sT0, sSB = 22, 23, 24
vPF = 244
vRQ = 245
sPD = 30


class Gen:
    def __init__(self, stamps=False, dry=True, pol="nt", pace=False, dwo=16, dffn=24, qfirst=2, ne=3, pd=1, notail=False, noq=False, qbar=False, prog=False, nopoll=False, noprod=False, noclean=False, qsleep=0, pool=256, look=8, transpose=True, chunk=4, rot=0, pert=None):
        self.a = Asm(); self.stamps = stamps; self.dry = dry; self.pol = pol; self.pace = pace
        self.dwo = dwo; self.dffn = dffn; self.qfirst = qfirst; self.ne = ne; self.pd = pd; self.notail = notail; self.noq = noq; self.qbar = qbar; self.prog = prog; self.nopoll = nopoll; self.noprod = noprod; self.noclean = noclean; self.qsleep = qsleep; self.pool = pool; self.look = look; self.transpose = transpose; self.chunk = chunk; self.rot = rot; self.pert = pert; self.cshift = 12 + chunk.bit_length() - 1
        self.nst = 0

    def stamp(self, k):
        if self.stamps:
            self.a(f"s_memrealtime s[{sST+2*k}:{sST+2*k+1}]")

    def skip_if_dry(self, lab):
        if self.dry:
            self.a(f"s_cmp_eq_u32 s{sDRY}, 1")
            self.a(f"s_cbranch_scc1 {lab}")

    def barrier(self):
        a = self.a
        if self.dry:
            l = a.newlabel("L_nb")
            self.skip_if_dry(l)
            a("s_barrier")
            a.label(l)
        else:
            a("s_barrier")

    def only_waves_below(self, n, lab):
        a = self.a
        if self.dry:
            a(f"s_cmp_ge_u32 s{sIDX+1}, {n}")
        else:
            a(f"s_cmp_ge_u32 s{sWV}, {n}")
        a(f"s_cbranch_scc1 {lab}")

    def store(self, data, n, voff, soff, srd=RWS, imm=0, flags="sc1"):
        a = self.a
        op = {1: "dword", 2: "dwordx2", 4: "dwordx4"}[n]
        d = f"v{data}" if n == 1 else vr(data, n)
        l = None
        if self.dry:
            l = a.newlabel("L_ns"); self.skip_if_dry(l)
        a(f"buffer_store_{op} {d}, v{voff}, {sr(srd,4)}, {soff} offen offset:{imm} {flags}")
        if l: a.label(l)

    def poll(self, groups, tmp, bad="-1", words=None, gate=None, tail=True):
        a = self.a
        done = a.newlabel("L_pdone"); top = a.newlabel("L_poll")
        if tail: self.skip_if_dry(done)
        for k in range(len(groups)):
            a(f"s_mov_b64 s[{sM+2*k}:{sM+2*k+1}], -1")
        a.label(top)
        for k, grp in enumerate(groups):
            sk = a.newlabel("L_psk")
            a(f"s_mov_b64 exec, s[{sM+2*k}:{sM+2*k+1}]")
            a(f"s_cbranch_execz {sk}")
            for (dst, n, voff, soff, imm) in grp:
                op = {1: "dword", 2: "dwordx2", 4: "dwordx4"}[n]
                d = f"v{dst}" if n == 1 else vr(dst, n)
                a(f"buffer_load_{op} {d}, v{voff}, {sr(RWS,4)}, {soff} offen offset:{imm} sc1 ;POLL")
            a.label(sk)
        a("s_mov_b64 exec, -1")
        a("s_waitcnt vmcnt(0)")
        for k, grp in enumerate(groups):
            if words is None:
                ws = [dst + i for (dst, n, _, _, _) in grp for i in range(n)]
                a(f"v_max_u32 v{tmp}, v{ws[0]}, v{ws[1]}")
                i = 2
                while i < len(ws):
                    if i + 1 < len(ws):
                        a(f"v_max3_u32 v{tmp}, v{tmp}, v{ws[i]}, v{ws[i+1]}"); i += 2
                    else:
                        a(f"v_max_u32 v{tmp}, v{tmp}, v{ws[i]}"); i += 1
                a(f"v_cmp_eq_u32 s[{sM+2*k}:{sM+2*k+1}], -1, v{tmp}")
            else:
                ws = words[k]
                a(f"v_xor_b32 v{tmp}, s{sTAG}, v{ws[0]}")
                for w in ws[1:]:
                    a(f"v_xor_b32 v{tmp+1}, s{sTAG}, v{w}")
                    a(f"v_or_b32 v{tmp}, v{tmp}, v{tmp+1}")
                a(f"v_cmp_ne_u32 s[{sM+2*k}:{sM+2*k+1}], 0, v{tmp}")
        a("s_nop 0")
        a(f"s_mov_b64 vcc, s[{sM}:{sM+1}]")
        for k in range(1, len(groups)):
            a(f"s_or_b64 vcc, vcc, s[{sM+2*k}:{sM+2*k+1}]")
        a(f"s_cmp_eq_u64 vcc, 0")
        a(f"s_cbranch_scc1 {done}")
        a(f"s_sub_u32 s{sTO}, s{sTO}, 1")
        a(f"s_cbranch_scc1 L_exit")
        if gate == "sleep":
            a("s_sleep 8")
        elif not tail and self.qsleep:
            a(f"s_sleep {self.qsleep}")
        a(f"s_branch {top}")
        a.label(done)

    def prepoll(self, dst, n, voff, soff, tmp, maxbad):
        a = self.a
        done = a.newlabel("L_gdone"); top = a.newlabel("L_gate")
        self.skip_if_dry(done)
        a.label(top)
        op = {1: "dword", 2: "dwordx2", 4: "dwordx4"}[n]
        d = f"v{dst}" if n == 1 else vr(dst, n)
        a(f"buffer_load_{op} {d}, v{voff}, {sr(RWS,4)}, {soff} offen sc1 ;POLL")
        a("s_waitcnt vmcnt(0)")
        a(f"v_cmp_eq_u32 vcc, -1, v{dst}")
        a("s_nop 0")
        a(f"s_bcnt1_i32_b64 s12, vcc")
        a(f"s_cmp_le_u32 s12, {maxbad}")
        a(f"s_cbranch_scc1 {done}")
        a(f"s_sub_u32 s{sTO}, s{sTO}, 1")
        a(f"s_cbranch_scc1 L_exit")
        a("s_sleep 8")
        a(f"s_branch {top}")
        a.label(done)

    def check_flags(self):
        a = self.a
        ok = a.newlabel("L_flok")
        self.skip_if_dry(ok)
        a(f"v_xor_b32 v8, s{sTAG}, v{FL}")
        for i in range(1, 4):
            a(f"v_xor_b32 v9, s{sTAG}, v{FL+i}")
            a(f"v_or_b32 v8, v8, v9")
        a("v_cmp_ne_u32 vcc, 0, v8")
        a("s_nop 0")
        a("s_cmp_eq_u64 vcc, 0")
        a(f"s_cbranch_scc1 {ok}")
        a(f"v_lshlrev_b32 v4, 4, v{vLane}")
        a(f"s_mov_b32 s13, {WS_FLAG:#x}")
        self.poll([[(FL, 4, 4, "s13", 0)]], 8, words=[[FL, FL + 1, FL + 2, FL + 3]], gate="sleep")
        a.label(ok)

    def ldK(self, slot):
        so = sOF0 + slot if slot < 2 else sE + slot - 2
        for j in range(4):
            self.a(f"buffer_load_dwordx4 {vr(RING+32*slot+4*j,4)}, v{vKo}, {sr(RK,4)}, s{so} offen offset:{j*64} {self.pol}")
    def ldV(self, slot):
        so = sOF0 + slot if slot < 2 else sE + slot - 2
        for t in range(4):
            self.a(f"buffer_load_dwordx4 {vr(RING+32*slot+16+4*t,4)}, v{vVo}, {sr(RV,4)}, s{so} offen offset:{t*1024} {self.pol}")

    def unit(self, d):
        a = self.a
        K = RING + 32 * d; V = K + 16
        ring = d < 2
        if ring:
            a(f"s_cmp_ge_u32 s{sOF0+d}, s{RK+2}")
            a("s_cbranch_scc1 L_epi")
            a("s_mov_b64 exec, 1")
            a(f"ds_add_rtn_u32 v{vTk}, v{vTa}, v{vT1}")
            a("s_mov_b64 exec, -1")
            a(f"s_waitcnt vmcnt({8*D-4})")
        else:
            a(f"s_cmp_ge_u32 s{sE+d-2}, s{RK+2}")
            a("s_cbranch_scc1 L_loop")
        for j in range(4):
            c = "0" if j == 0 else vr(S, 4)
            a(f"v_mfma_f32_16x16x32_bf16 {vr(S,4)}, {vr(K+4*j,4)}, {vr(Q+4*j,4)}, {c}")
            if j == 1 and ring:
                a("s_waitcnt lgkmcnt(0)")
                a(f"v_readfirstlane_b32 s{sOF0+d}, v{vTk}")
        if ring:
            a(f"s_cmp_ge_u32 s{sOF0+d}, s{sT0}")
            a(f"s_cbranch_scc1 L_slow{d}")
            a(f"s_add_u32 s{sOF0+d}, s{sOF0+d}, s{sSLAB}")
            a(f"s_and_b32 s{sOF0+d}, s{sOF0+d}, 0x7fffff")
            a.label(f"L_back{d}")
            self.ldK(d)
            a("s_nop 0")
        else:
            a("s_nop 7")
        for r in range(4):
            a(f"v_cvt_pk_bf16_f32 v{R+r}, 0, v{S+r}")
        for r in range(4):
            a(f"v_mul_f32 v{R+r}, s{sSC}, v{R+r}")
        for r in range(4):
            a(f"v_cvt_pk_bf16_f32 v{R+r}, 0, v{R+r}")
        a(f"v_max3_f32 v{vT}, v{R}, v{R+1}, v{R+2}")
        a(f"v_max_f32 v{vT}, v{vT}, v{R+3}")
        xhalf32(a, vT, vU, "max")
        xrow16(a, vT, vU, "max")
        a(f"v_mul_f32 v{vT}, s{sL2E}, v{vT}")
        a(f"v_max_f32 v{vCn}, v{vC}, v{vT}")
        a(f"v_sub_f32 v{vAa}, v{vC}, v{vCn}")
        a(f"v_exp_f32 v{vAa}, v{vAa}")
        for r in range(4):
            a(f"v_fma_f32 v{R+r}, v{R+r}, s{sL2E}, -v{vCn}")
        a(f"v_mov_b32 v{vC}, v{vCn}")
        for r in range(4):
            a(f"v_exp_f32 v{R+r}, v{R+r}")
        for g in range(4):
            a(f"v_mov_b32_dpp v{vAo}, v{vAa} row_newbcast:{4*g} row_mask:{1<<g:#x} bank_mask:0xf")
        a(f"v_mul_f32 v{vL}, v{vL}, v{vAa}")
        for t in range(4):
            a(f"v_cvt_pk_bf16_f32 v{vT}, v{R+t}, v{R+t}")
            a(f"v_and_b32 v{AW+4*t+2}, v{vT}, v{vM0}")
            a(f"v_and_b32 v{AW+4*t+3}, v{vT}, v{vM1}")
        for r in range(8):
            a(f"v_mul_f32 v{O0+r}, v{O0+r}, v{vAo}")
        a(f"v_add_f32 v{R}, v{R}, v{R+1}")
        a(f"v_add_f32 v{R+2}, v{R+2}, v{R+3}")
        a(f"v_add_f32 v{vL}, v{vL}, v{R}")
        a(f"v_add_f32 v{vL}, v{vL}, v{R+2}")
        if ring:
            a(f"s_waitcnt vmcnt({8*D-4})")
            a(f"s_cmp_lg_u32 s{sPD+1-d}, -1")
            a(f"s_cbranch_scc1 L_dlv{1-d}")
            a.label(f"L_dlb{1-d}")
        for t in range(4):
            a(f"v_mfma_f32_16x16x32_bf16 {vr(O0,4)}, {vr(AW+4*t+2,4)}, {vr(V+4*t,4)}, {vr(O0,4)}")
            a(f"v_mfma_f32_16x16x32_bf16 {vr(O1,4)}, {vr(AW+4*t,4)}, {vr(V+4*t,4)}, {vr(O1,4)}")
        if ring: self.ldV(d)
        if ring: self.proghook()

    def proghook(self):
        a = self.a
        if not self.prog: return
        l = a.newlabel("L_np")
        a(f"v_readfirstlane_b32 s28, v{vTk}")
        a("s_and_b32 s12, s28, 0x7000")
        a(f"s_cbranch_scc1 {l}")
        a("s_memrealtime s[26:27]")
        a(f"s_lshr_b32 s12, s28, 13")
        a("s_lshl_b32 s13, s2, 7")
        a("s_add_u32 s13, s13, s12")
        a(f"s_add_u32 s13, s13, {STAMP+0x20000:#x}")
        a("s_waitcnt lgkmcnt(0)")
        a("v_mov_b32 v7, s26")
        a("v_mov_b32 v4, 0")
        a("s_mov_b64 exec, 1")
        a(f"buffer_store_dword v7, v4, {sr(RWS,4)}, s13 offen")
        a("s_mov_b64 exec, -1")
        a.label(l)


    def deliver(self, d):
        a = self.a
        a("s_mov_b64 exec, 1")
        a(f"v_cmp_gt_u32 vcc, {self.pool*4096:#x}, v{vRQ+d}")
        a(f"v_add_u32 v7, s25, v{vRQ+d}")
        a("v_and_b32 v7, 0x7fffff, v7")
        a(f"v_mov_b32 v4, {INVALID:#x}")
        a("v_cndmask_b32 v7, v4, v7, vcc")
        a(f"v_mov_b32 v4, s{sPD+d}")
        a(f"ds_write_b32 v4, v7 offset:{LCH}")
        a("s_mov_b64 exec, -1")
        a(f"s_mov_b32 s{sPD+d}, -1")

    def flush(self):
        a = self.a
        for d in range(2):
            l = a.newlabel("L_fl")
            a(f"s_cmp_eq_u32 s{sPD+d}, -1")
            a(f"s_cbranch_scc1 {l}")
            a("s_waitcnt vmcnt(0)")
            self.deliver(d)
            a.label(l)

    def slow(self, t, back, d):
        a = self.a
        noreq = a.newlabel("L_nr"); pool = a.newlabel("L_pl"); spin = a.newlabel("L_sp"); okf = a.newlabel("L_okf"); chk = a.newlabel("L_chk")
        a(f"s_sub_u32 s12, s{t}, s{sT0}")
        a(f"s_and_b32 s13, s12, {self.chunk*4096-1:#x}")
        a(f"s_cbranch_scc1 {noreq}")
        self.flush()
        a(f"s_lshr_b32 s{sPD+d}, s12, {self.cshift-2}")
        a("s_and_b32 s13, s2, 15")
        a.label(chk)
        a(f"v_cmp_ne_u32 vcc, s{sTAG}, v{vPF}")
        a("s_nop 0")
        a("s_cmp_eq_u64 vcc, 0")
        a(f"s_cbranch_scc1 {okf}")
        a(f"s_sub_u32 s{sTO}, s{sTO}, 1")
        a("s_cbranch_scc1 L_exit")
        a("s_lshl_b32 vcc_lo, s13, 2")
        a("v_mov_b32 v4, vcc_lo")
        a(f"v_add_u32 v4, {WS_FLAG:#x}, v4")
        a(f"buffer_load_dword v{vPF}, v4, {sr(RWS,4)}, 0 offen sc1")
        a("s_waitcnt vmcnt(0)")
        a(f"s_branch {chk}")
        a.label(okf)
        a("s_lshl_b32 s13, s13, 8")
        a(f"s_add_u32 s13, s13, {WS_POOL:#x}")
        a("v_mov_b32 v4, 0")
        a(f"v_mov_b32 v{vRQ+d}, {self.chunk*4096:#x}")
        a("s_mov_b64 exec, 1")
        a(f"buffer_atomic_add v{vRQ+d}, v4, {sr(RWS,4)}, s13 offen sc0 sc1")
        a("s_mov_b64 exec, -1")
        a.label(noreq)
        a(f"s_cmp_ge_u32 s{t}, s{sSB}")
        a(f"s_cbranch_scc1 {pool}")
        a(f"s_add_u32 s{t}, s{t}, s{sSLAB}")
        a(f"s_and_b32 s{t}, s{t}, 0x7fffff")
        a(f"s_branch {back}")
        a.label(pool)
        a(f"s_sub_u32 s{t}, s{t}, s{sSB}")
        a(f"s_lshr_b32 s12, s{t}, {self.cshift}")
        a("s_lshl_b32 s13, s12, 2")
        a(f"s_and_b32 s{t}, s{t}, {self.chunk*4096-1:#x}")
        a("v_mov_b32 v4, s13")
        a(f"ds_read_b32 v7, v4 offset:{LCH}")
        a("s_waitcnt lgkmcnt(0)")
        a("v_readfirstlane_b32 s12, v7")
        a(f"s_cmp_lg_u32 s12, {EMPTY:#x}")
        a(f"s_cbranch_scc1 {spin}_ok")
        self.flush()
        a.label(spin)
        a("v_mov_b32 v4, s13")
        a(f"ds_read_b32 v7, v4 offset:{LCH}")
        a("s_waitcnt lgkmcnt(0)")
        a("v_readfirstlane_b32 s12, v7")
        a(f"s_sub_u32 s{sTO}, s{sTO}, 1")
        a("s_cbranch_scc1 L_exit")
        a(f"s_cmp_eq_u32 s12, {EMPTY:#x}")
        a(f"s_cbranch_scc1 {spin}")
        a.label(f"{spin}_ok")
        a(f"s_add_u32 s{t}, s{t}, s12")
        a(f"s_branch {back}")

    def ao_addr(self):
        a = self.a
        a(f"s_lshl_b32 s12, s{sB}, 5")
        a(f"s_lshl_b32 s13, s{sHKV}, 2")
        a("s_add_u32 s12, s12, s13")
        a("s_lshl_b32 s13, s12, 13")
        a(f"s_lshl_b32 vcc_lo, s{sS}, 9")
        a("s_add_u32 s13, s13, vcc_lo")
        a(f"s_add_u32 s13, s13, {WS_AO:#x}")
        a("s_lshl_b32 s12, s12, 7")
        a(f"s_lshl_b32 vcc_lo, s{sS}, 3")
        a("s_add_u32 s12, s12, vcc_lo")
        a(f"s_add_u32 s12, s12, {WS_AM:#x}")

    def c_addr(self, v, bshift):
        a = self.a
        a(f"v_lshrrev_b32 v{v}, 1, v{vG}")
        a(f"v_lshlrev_b32 v{v}, {bshift}, v{v}")
        a(f"v_lshl_add_u32 v{v}, v{vI}, 5, v{v}")
        a(f"v_and_b32 v7, 1, v{vG}")
        a(f"v_lshl_add_u32 v{v}, v7, 4, v{v}")

    def xwave_reduce(self, ACC, T, done):
        a = self.a
        a("v_lshlrev_b32 v4, 4, v0")
        a("s_nop 7")
        a(f"ds_write_b128 v4, {vr(ACC,4)} offset:{LR}")
        a("s_waitcnt lgkmcnt(0)")
        self.barrier()
        self.only_waves_below(1, done)
        a(f"v_lshlrev_b32 v4, 4, v{vLane}")
        for w in range(8):
            a(f"ds_read_b128 {vr(T+4*w,4)}, v4 offset:{LR+1024*w}")
        for w in range(1, 8):
            a(f"s_waitcnt lgkmcnt({7-w})")
            for r in range(4):
                a(f"v_add_f32 v{T+r}, v{T+r}, v{T+4*w+r}")

    def gen(self):
        a = self.a
        name = NAME + "_kernel"
        kernel_begin(a, name)
        a("s_cmp_ge_u32 s2, 256")
        a("s_cbranch_scc1 L_exit")
        self.stamp(0)
        load_ptrs(a)
        if self.transpose:
            a("s_and_b32 s3, s2, 15")
            a("s_lshl_b32 s3, s3, 4")
            a("s_lshr_b32 s2, s2, 4")
            a("s_or_b32 s2, s2, s3")
        a("v_and_b32 v1, 63, v0")
        a("v_lshrrev_b32 v2, 4, v1")
        a("v_and_b32 v3, 15, v0")
        a("v_lshrrev_b32 v4, 6, v0")
        a("s_mov_b32 s6, 0xff00ff00")
        a("s_mov_b32 s7, 0xff00ff00")
        a("v_readfirstlane_b32 s3, v4")
        a(f"s_and_b32 s{sHKV}, s2, 7")
        a(f"s_bfe_u32 s{sB}, s2, 0x10003")
        a(f"s_lshr_b32 s{sS}, s2, 4")
        a(f"s_lshr_b32 s{sJ}, s2, 3")
        a(f"s_mov_b32 s{sL2E}, {LOG2E:#x}")
        a(f"s_mov_b32 s{sSC}, {SCALE:#x}")
        a(f"s_mov_b32 s{sDRY}, 0")
        a(f"s_mov_b32 s{sTO}, 0x40000")
        a(f"s_mov_b32 s{sROLE}, 0")
        a("s_cmp_lt_u32 s2, 92")
        a(f"s_cselect_b32 s{sROLE}, 3, s{sROLE}")
        a("s_cmp_lt_u32 s2, 64")
        a(f"s_cselect_b32 s{sROLE}, 2, s{sROLE}")
        a("s_cmp_lt_u32 s2, 32")
        a(f"s_cselect_b32 s{sROLE}, 1, s{sROLE}")
        a(f"s_and_b32 s{sIDX}, s{sJ}, 3")
        if self.notail: a(f"s_mov_b32 s{sROLE}, 0")
        ST = 2048 - self.pool
        NA = -(-(ST + 2 * self.dwo + 2 * self.dffn) // 16); NB = -(-(ST + 2 * self.dwo + self.dffn) // 16)
        a("s_and_b32 s12, s2, 12")
        a("s_cmp_eq_u32 s12, 12")
        a(f"s_mov_b32 s{sM+4}, {NA}")
        a(f"s_cmov_b32 s{sM+4}, {NB}")
        a(f"s_cselect_b32 s{sM+5}, 1, 2")
        for k in range(2):
            a(f"s_add_u32 s12, s{sS}, {k}")
            a(f"s_mul_i32 s{sM+k}, s12, s{sM+4}")
            a("s_sub_u32 s13, s12, 2")
            a("s_max_i32 s13, s13, 0")
            a("s_min_i32 s13, s13, 2")
            a(f"s_mul_i32 s13, s13, {self.dwo}")
            a(f"s_sub_u32 s{sM+k}, s{sM+k}, s13")
            a("s_sub_u32 s13, s12, 4")
            a("s_max_i32 s13, s13, 0")
            a(f"s_min_i32 s13, s13, s{sM+5}")
            a(f"s_mul_i32 s13, s13, {self.dffn}")
            a(f"s_sub_u32 s{sM+k}, s{sM+k}, s13")
        a(f"s_min_u32 s{sM+1}, s{sM+1}, {ST}")
        a(f"s_sub_u32 s{sM+1}, s{sM+1}, s{sM}")
        a(f"s_lshl_b32 s{sM+1}, s{sM+1}, 12")
        a(f"s_lshl_b32 s{sM+2}, s{sM}, 12")
        a(f"s_lshl_b32 s13, s{sB}, 3")
        a(f"s_add_u32 s13, s13, s{sHKV}")
        a(f"s_lshl_b32 s{sM}, s13, 23")
        a("v_and_b32 v5, 3, v3")
        a("v_lshlrev_b32 v5, 10, v5")
        a("v_lshrrev_b32 v6, 2, v3")
        a("v_lshl_add_u32 v5, v6, 8, v5")
        a("v_lshl_add_u32 v5, v2, 4, v5")
        a("v_lshlrev_b32 v6, 8, v2")
        a("v_lshl_add_u32 v6, v3, 4, v6")
        a("s_cmp_ge_u32 s3, 4")
        a("s_cbranch_scc1 L_noprio")
        a("s_setprio 3")
        a.label("L_noprio")
        a(f"s_mov_b32 s{sIDX+1}, s3")
        a(f"v_mov_b32 v{vTa}, {LCNT}")
        a(f"v_mov_b32 v{vT1}, 0x1000")
        a("v_mov_b32 v8, 0")
        a(f"v_mov_b32 v9, {1 if self.noq else 0}")
        a(f"ds_write_b64 v{vTa}, v[8:9]")
        a(f"v_mov_b32 v10, {EMPTY:#x}")
        a(f"v_mov_b32 v11, {EMPTY:#x}")
        a(f"v_lshlrev_b32 v4, 3, v{vLane}")
        a(f"ds_write_b64 v4, v[10:11] offset:{LCH}")
        a("s_waitcnt lgkmcnt(0)")
        a(f"s_load_dword s{sTAG}, s[{P_WS}:{P_WS+1}], {WS_EPOCH}")
        make_srd(a, RX, P_X, 2048)
        X = 8; Y = 16; F = 32
        for rr, p in ((RK, P_K), (RV, P_V)):
            a(f"s_add_u32 s{rr}, s{p}, s{sM}")
            a(f"s_addc_u32 s{rr+1}, s{p+1}, 0")
            a(f"s_and_b32 s{rr+1}, s{rr+1}, 0xffff")
            a(f"s_mov_b32 s{rr+2}, 0x800000")
            a(f"s_mov_b32 s{rr+3}, 0x00020000")
        make_srd(a, RWS, P_WS, 0x400000 if self.stamps else WS_END)
        a(f"s_mov_b32 s20, s{sM+2}")
        a(f"s_mov_b32 s21, s{sM+1}")
        if self.noprod:
            a("s_barrier")
            a("s_branch L_noqld")
        a("s_cmp_lt_u32 s2, 128")
        a("s_cbranch_scc1 L_noprod")
        a("s_cmp_ge_u32 s3, 2")
        a("s_cbranch_scc1 L_noprod")
        make_srd(a, RW1, P_WQ, 512 * 4096 * 2)
        a(f"v_lshlrev_b32 v4, 5, v{vLane}")
        a(f"buffer_load_dwordx4 {vr(X,4)}, v4, {sr(RX,4)}, 0 offen")
        a(f"buffer_load_dwordx4 {vr(X+4,4)}, v4, {sr(RX,4)}, 0 offen offset:16")
        a("v_lshrrev_b32 v4, 3, v3")
        a("v_lshlrev_b32 v4, 10, v4")
        a("v_lshl_add_u32 v4, v2, 5, v4")
        a(f"s_and_b32 s{sJ}, s2, 31")
        a("s_bfe_u32 s13, s2, 0x20005")
        a("s_lshl_b32 s13, s13, 1")
        a(f"s_add_u32 s{sM+2}, s13, s3")
        a(f"s_lshl_b32 s12, s{sM+2}, 7")
        a(f"buffer_load_dwordx4 {vr(Y,4)}, v4, {sr(RX,4)}, s12 offen")
        a(f"buffer_load_dwordx4 {vr(Y+4,4)}, v4, {sr(RX,4)}, s12 offen offset:16")
        a(f"s_lshl_b32 s13, s{sM+2}, 19")
        a(f"s_lshl_b32 s12, s{sJ}, 8")
        a("s_add_u32 s13, s13, s12")
        a("v_lshlrev_b32 v4, 17, v2")
        a("v_lshl_add_u32 v4, v3, 4, v4")
        for t in range(16):
            a(f"buffer_load_dwordx4 {vr(RING+4*t,4)}, v4, {sr(RW1,4)}, s13 offen nt")
            a("s_add_u32 s13, s13, 8192")
        a("s_barrier")
        make_sels(a, SEL, 3, 48, 49, 15)
        a("v_lshrrev_b32 v4, 1, v2")
        a("v_lshlrev_b32 v4, 13, v4")
        a("v_lshl_add_u32 v4, v3, 6, v4")
        a("v_and_b32 v7, 1, v2")
        a("v_lshl_add_u32 v4, v7, 5, v4")
        a(f"s_lshl_b32 s13, s{sJ}, 14")
        a(f"s_lshl_b32 s12, s{sM+2}, 10")
        a("s_add_u32 s13, s13, s12")
        a(f"s_add_u32 s13, s13, {WS_QP:#x}")
        a("s_waitcnt vmcnt(16)")
        ln_stats(a, X, F, 50, 51, 48, 49, 6)
        ln_apply(a, Y, 8, 50, 51, 48, 49)
        a("s_waitcnt lgkmcnt(0)")
        a(f"s_add_u32 s12, s{sTAG}, {TAGK:#x}")
        for r in range(4):
            a(f"v_mov_b32 v{9+2*r}, s12")
        gemv_mfma(a, Y, 16, RING, SEL, 52, 56, 60, wait=lambda t: a(f"s_waitcnt vmcnt({15-t})"))
        a("s_nop 7")
        for r in range(4):
            a(f"v_mov_b32 v{8+2*r}, v{60+r}")
        a(f"buffer_store_dwordx4 v[8:11], v4, {sr(RWS,4)}, s13 offen sc1")
        a(f"buffer_store_dwordx4 v[12:15], v4, {sr(RWS,4)}, s13 offen offset:16 sc1")
        self.stamp(6)
        a("s_branch L_noqld")
        a.label("L_noprod")
        a("s_barrier")
        a("s_cmp_ge_u32 s2, 32")
        a("s_cbranch_scc1 L_noqld")
        a("s_cmp_ge_u32 s3, 2")
        a("s_cbranch_scc1 L_noqld")
        a(f"v_lshlrev_b32 v4, 4, v{vLane}")
        a("s_lshl_b32 s13, s2, 14")
        a("s_lshl_b32 s12, s3, 13")
        a("s_add_u32 s13, s13, s12")
        a(f"s_add_u32 s13, s13, {WS_QP:#x}")
        a("s_add_u32 s12, s13, 0x1000")
        a("s_waitcnt lgkmcnt(0)")
        a(f"s_add_u32 s{sTAG}, s{sTAG}, {TAGK:#x}")
        groups = [[(8 + 4 * k, 4, 4, "s13" if k < 4 else "s12", (k % 4) * 1024) for k in (2 * i, 2 * i + 1)] for i in range(4)]
        words = [[9 + 8 * i, 11 + 8 * i, 13 + 8 * i, 15 + 8 * i] for i in range(4)]
        self.poll(groups, 40, words=words, tail=False)
        for k in range(1, 8):
            a(f"v_add_f32 v8, v8, v{8+4*k}")
            a(f"v_add_f32 v10, v10, v{10+4*k}")
        a(f"v_lshlrev_b32 v4, 3, v{vLane}")
        a("s_lshl_b32 s13, s3, 14")
        a("s_lshl_b32 s12, s2, 9")
        a("s_add_u32 s13, s13, s12")
        a(f"s_add_u32 s13, s13, {WS_QG:#x}")
        a("v_cvt_pk_bf16_f32 v8, v8, v10")
        a(f"buffer_store_dwordx2 v[8:9], v4, {sr(RWS,4)}, s13 offen sc1")
        a(f"s_sub_u32 s{sTAG}, s{sTAG}, {TAGK:#x}")
        self.stamp(6)
        a.label("L_noqld")
        a(f"s_cmp_lg_u32 s{sROLE}, 3")
        a("s_cbranch_scc1 L_idx")
        a(f"s_sub_u32 s{sIDX}, s2, 64")
        a.label("L_idx")
        make_srd(a, ROUT, P_OUT, 2048)
        a(f"s_cmp_lg_u32 s3, {44 if self.noclean else 3}")
        a("s_cbranch_scc1 L_noclean")
        for r in range(4):
            a(f"v_mov_b32 v{8+r}, -1")
        self.ao_addr()
        a(f"v_lshrrev_b32 v4, 5, v{vLane}")
        a("v_lshlrev_b32 v4, 13, v4")
        a(f"v_and_b32 v7, 31, v{vLane}")
        a("v_lshl_add_u32 v4, v7, 4, v4")
        a(f"buffer_store_dwordx4 v[8:11], v4, {sr(RWS,4)}, s13 offen sc1")
        a("s_add_u32 s13, s13, 0x4000")
        a(f"buffer_store_dwordx4 v[8:11], v4, {sr(RWS,4)}, s13 offen sc1")
        a(f"v_and_b32 v4, 3, v{vLane}")
        a("v_lshlrev_b32 v4, 7, v4")
        a(f"buffer_store_dwordx2 v[8:9], v4, {sr(RWS,4)}, s12 offen sc1")
        a(f"s_cmp_eq_u32 s{sROLE}, 2")
        a("s_cbranch_scc0 L_cl_n2")
        self.c_addr(4, 11)
        a(f"s_lshl_b32 s13, s{sHKV}, 12")
        a(f"s_lshl_b32 s12, s{sIDX}, 9")
        a("s_add_u32 s13, s13, s12")
        a(f"s_add_u32 s13, s13, {WS_WP:#x}")
        a(f"buffer_store_dwordx4 v[8:11], v4, {sr(RWS,4)}, s13 offen sc1")
        a.label("L_cl_n2")
        a(f"s_cmp_eq_u32 s{sROLE}, 3")
        a("s_cbranch_scc0 L_cl_n3")
        a(f"v_lshlrev_b32 v4, 4, v{vLane}")
        a(f"s_lshl_b32 s13, s{sIDX}, 13")
        a(f"s_add_u32 s13, s13, {WS_DP:#x}")
        for k in range(8):
            a(f"buffer_store_dwordx4 v[8:11], v4, {sr(RWS,4)}, s13 offen offset:{(k%4)*1024} sc1")
            if k == 3: a("s_add_u32 s13, s13, 4096")
        a.label("L_cl_n3")
        a("s_cmp_ge_u32 s2, 16")
        a("s_cbranch_scc1 L_cl_n4")
        a("v_mov_b32 v4, 0")
        a("s_lshl_b32 s13, s2, 8")
        a(f"s_add_u32 s13, s13, {WS_POOL:#x}")
        a(f"buffer_store_dword v4, v4, {sr(RWS,4)}, s13 offen sc1")
        a.label("L_cl_n4")
        a("s_lshl_b32 s13, s2, 2")
        a(f"s_add_u32 s13, s13, {WS_FLAG:#x}")
        a("v_mov_b32 v4, 0")
        a("s_waitcnt vmcnt(0) lgkmcnt(0)")
        a(f"s_add_u32 s12, s{sTAG}, {TAGK:#x}")
        a("v_mov_b32 v8, s12")
        a("s_mov_b64 exec, 1")
        a(f"buffer_store_dword v8, v4, {sr(RWS,4)}, s13 offen sc1")
        a("s_mov_b64 exec, -1")
        a.label("L_noclean")
        if self.stamps:
            a("s_cmp_lt_u32 s3, 2")
            a("s_cbranch_scc1 L_nst6")
            self.stamp(6)
            a.label("L_nst6")
        a(f"s_cmp_lt_u32 s{sROLE}, 2")
        a("s_cbranch_scc1 L_ring")
        a(f"s_cmp_eq_u32 s{sROLE}, 3")
        a("s_cbranch_scc1 L_ffn_w")
        make_srd(a, RW1, P_WO, 4096 * 512 * 2)
        a(f"s_lshl_b32 s13, s{sHKV}, 19")
        a("s_lshl_b32 s12, s3, 16")
        a("s_add_u32 s13, s13, s12")
        a(f"s_lshl_b32 s12, s{sIDX}, 8")
        a("s_add_u32 s13, s13, s12")
        a("v_lshlrev_b32 v4, 14, v2")
        a("v_lshl_add_u32 v4, v3, 4, v4")
        for t in range(16):
            a(f"buffer_load_dwordx4 {vr(W+4*t,4)}, v4, {sr(RW1,4)}, s13 offen offset:{(t%4)*1024} nt")
            if t % 4 == 3: a("s_add_u32 s13, s13, 4096")
        a("s_branch L_sels")
        a.label("L_ffn_w")
        make_srd(a, RW1, P_WG, 512 * 1792 * 2)
        make_srd(a, RW2, P_WU, 512 * 1792 * 2)
        make_srd(a, RWD, P_WD, 1792 * 512 * 2)
        a("s_mul_i32 s13, s3, 64*3584")
        a(f"s_lshl_b32 s12, s{sIDX}, 7")
        a("s_add_u32 s13, s13, s12")
        a("s_mov_b32 s12, 16*3584")
        a("v_mul_lo_u32 v4, v2, s12")
        a("v_and_b32 v7, 7, v3")
        a("v_lshl_add_u32 v4, v7, 4, v4")
        a("s_mov_b32 s12, s13")
        a("s_not_b64 exec, s[6:7]")
        for t in range(16):
            a(f"buffer_load_dwordx4 {vr(W+4*t,4)}, v4, {sr(RW1,4)}, s13 offen nt")
            a("s_add_u32 s13, s13, 3584")
        a("s_mov_b64 exec, s[6:7]")
        for t in range(16):
            a(f"buffer_load_dwordx4 {vr(W+4*t,4)}, v4, {sr(RW2,4)}, s12 offen nt")
            a("s_add_u32 s12, s12, 3584")
        a("s_mov_b64 exec, -1")
        a(f"s_lshl_b32 s13, s{sIDX}, 16")
        a("s_lshr_b32 s12, s3, 2")
        a("s_lshl_b32 s12, s12, 15")
        a("s_add_u32 s13, s13, s12")
        a("s_and_b32 s12, s3, 3")
        a("s_lshl_b32 s12, s12, 8")
        a("s_add_u32 s13, s13, s12")
        a("v_lshlrev_b32 v4, 13, v2")
        a("v_lshl_add_u32 v4, v3, 4, v4")
        for t in range(8):
            a(f"buffer_load_dwordx4 {vr(WD+4*t,4)}, v4, {sr(RWD,4)}, s13 offen offset:{(t%4)*1024} nt")
            if t % 4 == 3: a("s_add_u32 s13, s13, 4096")
        a.label("L_sels")
        make_sels(a, SEL, 3, 48, 49, 15)
        a("s_barrier")
        a.label("L_ring")
        def draw(dst):
            l1 = a.newlabel("L_df"); l2 = a.newlabel("L_dd")
            a("s_mov_b64 exec, 1")
            a(f"ds_add_rtn_u32 v{vTk}, v{vTa}, v{vT1}")
            a("s_mov_b64 exec, -1")
            a("s_waitcnt lgkmcnt(0)")
            a(f"v_readfirstlane_b32 s{dst}, v{vTk}")
            a("s_nop 0")
            a(f"s_cmp_lt_u32 s{dst}, s{sT0}")
            a(f"s_cbranch_scc1 {l1}")
            self.slow(dst, l2, 0)

            a.label(l1)
            a(f"s_add_u32 s{dst}, s{dst}, s{sSLAB}")
            a(f"s_and_b32 s{dst}, s{dst}, 0x7fffff")
            a.label(l2)
            self.flush()
        a(f"s_mov_b32 s{sPD}, -1")
        a(f"s_mov_b32 s{sPD+1}, -1")
        a("s_and_b32 s25, s2, 15")
        a(f"s_mul_i32 s25, s25, {self.rot*4096:#x}")
        a("s_add_u32 s20, s20, s25")
        a(f"s_add_u32 s25, s25, {(2048-self.pool)*4096:#x}")
        a(f"s_mov_b32 s{sSLAB}, s20")
        a(f"s_mov_b32 s{sSB}, s21")
        a(f"s_sub_u32 s{sT0}, s21, {self.look*4096}")
        for e in range(3):
            a(f"s_mov_b32 s{sE+e}, -1")
        a(f"s_mov_b32 s{sE+3}, 0")
        a("s_waitcnt lgkmcnt(0)")
        a(f"s_add_u32 s{sTAG}, s{sTAG}, {TAGK:#x}")
        if not self.nopoll:
            a("s_cmp_eq_u32 s3, 2")
            a("s_cbranch_scc1 L_qg")
        a("s_setprio 0")
        a.label("L_ring2")
        a("s_and_b32 s12, s2, 15")
        a("s_lshl_b32 s12, s12, 2")
        a(f"s_add_u32 s12, s12, {WS_FLAG:#x}")
        a("v_mov_b32 v4, 0")
        a(f"v_mov_b32 v{vPF}, 0")
        for d in range(2):
            draw(sOF0 + d)
            self.ldK(d); self.ldV(d)
            self.proghook()
        a(f"s_cmp_ge_u32 s{sROLE}, 2")
        a("s_cbranch_scc1 L_waitq")
        for e in range(self.ne):
            a(f"ds_read_b32 v8, v{vTa} offset:4")
            a("s_waitcnt lgkmcnt(0)")
            a("v_readfirstlane_b32 s12, v8")
            a("s_cmp_lg_u32 s12, 0")
            a("s_cbranch_scc1 L_haveq")
            draw(sE + e)
            a(f"s_mov_b32 s{sE+3}, 1")
            self.ldK(2 + e); self.ldV(2 + e)
            self.proghook()
        a.label("L_waitq")
        a(f"ds_read_b32 v8, v{vTa} offset:4")
        a("s_waitcnt lgkmcnt(0)")
        a("v_readfirstlane_b32 s12, v8")
        a("s_cmp_lg_u32 s12, 0")
        a("s_cbranch_scc1 L_haveq")
        a(f"s_sub_u32 s{sTO}, s{sTO}, 1")
        a("s_cbranch_scc1 L_exit")
        a("s_sleep 2")
        a("s_branch L_waitq")
        a.label("L_qg")
        a(f"v_lshlrev_b32 v4, 4, v{vLane}")
        a(f"s_lshl_b32 s13, s{sB}, 14")
        a(f"s_lshl_b32 s12, s{sHKV}, 11")
        a("s_add_u32 s13, s13, s12")
        a(f"s_add_u32 s13, s13, {WS_QG:#x}")
        self.poll([[(8, 4, 4, "s13", 0), (12, 4, 4, "s13", 1024)]], 16, words=[[9, 11, 13, 15]], tail=False)
        a("v_mov_b32 v9, v10")
        a("v_mov_b32 v13, v14")
        a(f"v_lshlrev_b32 v4, 3, v{vLane}")
        a(f"ds_write_b64 v4, v[8:9] offset:{LQ}")
        a(f"ds_write_b64 v4, v[12:13] offset:{LQ+512}")
        a("v_mov_b32 v8, 1")
        a("s_waitcnt lgkmcnt(0)")
        a(f"ds_write_b32 v{vTa}, v8 offset:4")
        a("s_setprio 0")
        a("s_branch L_ring2")
        a.label("L_haveq")
        if self.qbar: a("s_barrier")
        self.stamp(1)
        a("v_lshrrev_b32 v4, 2, v3")
        a("v_lshlrev_b32 v4, 8, v4")
        a("v_lshl_add_u32 v4, v2, 4, v4")
        for j in range(4):
            a(f"ds_read_b128 {vr(Q+4*j,4)}, v4 offset:{LQ+j*64}")
        a(f"v_lshlrev_b32 v4, 4, v{vLane}")
        a(f"s_mov_b32 s13, {WS_FLAG:#x}")
        a(f"s_cmp_eq_u32 s{sROLE}, 0")
        a("s_cbranch_scc1 L_nofl")
        a(f"buffer_load_dwordx4 {vr(FL,4)}, v4, {sr(RWS,4)}, s13 offen sc1")
        a.label("L_nofl")
        a("s_and_b32 s12, s2, 15")
        a("s_lshl_b32 s12, s12, 2")
        a(f"s_add_u32 s12, s12, {WS_FLAG:#x}")
        a("v_mov_b32 v4, 0")
        a(f"buffer_load_dword v{vPF}, v4, {sr(RWS,4)}, s12 offen sc1")
        for r in (0, 1, 4, 5, 8, 9, 12, 13, 16, 17):
            a(f"v_mov_b32 v{AW+r}, 0")
        for r in range(8):
            a(f"v_mov_b32 v{O0+r}, 0")
        a(f"v_mov_b32 v{vC}, 0xf149f2ca")
        a(f"v_mov_b32 v{vL}, 0")
        a(f"v_and_b32 v{vT}, 1, v3")
        a(f"v_lshlrev_b32 v{vT}, 4, v{vT}")
        a(f"v_mov_b32 v{vU}, 0xffff")
        a(f"v_lshlrev_b32 v{vU}, v{vT}, v{vU}")
        a(f"v_and_b32 v{vT}, 2, v3")
        a(f"v_cmp_eq_u32 vcc, 0, v{vT}")
        a("s_nop 1")
        a(f"v_cndmask_b32 v{vM0}, 0, v{vU}, vcc")
        a(f"v_cndmask_b32 v{vM1}, v{vU}, 0, vcc")
        a("s_waitcnt lgkmcnt(0)")
        a.raw(".p2align 3")
        a.label("L_loop")
        self.unit(0)
        self.unit(1)
        a(f"s_cmp_eq_u32 s{sE+3}, 0")
        a("s_cbranch_scc1 L_loop")
        a(f"s_mov_b32 s{sE+3}, 0")
        a(f"s_waitcnt vmcnt({8*D})")
        for e in range(self.ne):
            self.unit(2 + e)
        a("s_branch L_loop")
        for d in range(2):
            a.label(f"L_slow{d}")
            self.slow(sOF0 + d, f"L_back{d}", d)
            a.label(f"L_dlv{d}")
            self.deliver(d)
            a(f"s_branch L_dlb{d}")
        a.label("L_epi")
        a.raw(";TAIL_BEGIN")
        self.stamp(2)
        self.flush()
        xhalf32(a, vL, vU)
        xrow16(a, vL, vU)
        a("s_lshl_b32 s13, s3, 11")
        a("v_lshlrev_b32 v4, 9, v2")
        a("v_lshl_add_u32 v4, v3, 5, v4")
        a("v_add_u32 v4, s13, v4")
        a(f"ds_write_b128 v4, {vr(O0,4)} offset:{LO}")
        a(f"ds_write_b128 v4, {vr(O1,4)} offset:{LO+16}")
        a("v_lshrrev_b32 v4, 2, v3")
        a("v_lshlrev_b32 v4, 5, v4")
        a("s_lshl_b32 s13, s3, 2")
        a("v_add_u32 v4, s13, v4")
        a(f"ds_write_b32 v4, v{vC} offset:{LC}")
        a(f"ds_write_b32 v4, v{vL} offset:{LL}")
        self.ao_addr()
        a("s_waitcnt lgkmcnt(0)")
        self.barrier()
        self.stamp(4)
        self.only_waves_below(2, "L_role")
        CW = 8; LW = 16; OW = 24; OA = 56
        a("v_bfe_u32 v7, v0, 5, 2")
        a("v_lshlrev_b32 v4, 5, v7")
        for w in range(0, NW, 4):
            a(f"ds_read_b128 {vr(CW+w,4)}, v4 offset:{LC+4*w}")
            a(f"ds_read_b128 {vr(LW+w,4)}, v4 offset:{LL+4*w}")
        a("v_and_b32 v4, 127, v0")
        a("v_lshlrev_b32 v4, 4, v4")
        for w in range(NW):
            a(f"ds_read_b128 {vr(OW+4*w,4)}, v4 offset:{LO+2048*w}")
        a(f"s_waitcnt lgkmcnt({NW})")
        a(f"v_max_f32 v{vC}, v{CW}, v{CW+1}")
        for w in range(2, NW, 2):
            a(f"v_max3_f32 v{vC}, v{vC}, v{CW+w}, v{CW+w+1}")
        for w in range(NW):
            a(f"v_sub_f32 v{CW+w}, v{CW+w}, v{vC}")
        for w in range(NW):
            a(f"v_exp_f32 v{CW+w}, v{CW+w}")
        a("v_lshlrev_b32 v4, 13, v7")
        a(f"v_mul_f32 v{vL}, v{CW}, v{LW}")
        for w in range(1, NW):
            a(f"v_fmac_f32 v{vL}, v{CW+w}, v{LW+w}")
        a("v_and_b32 v62, 31, v0")
        a("v_lshl_add_u32 v4, v62, 4, v4")
        for w in range(NW):
            a(f"s_waitcnt lgkmcnt({NW-1-w})")
            for r in range(4):
                if w == 0: a(f"v_mul_f32 v{OA+r}, v{CW}, v{OW+r}")
                else: a(f"v_fmac_f32 v{OA+r}, v{CW+w}, v{OW+4*w+r}")
        for r in range(4):
            a(f"v_min_u32 v{OA+r}, -2, v{OA+r}")
        a(f"v_min_u32 v{vC}, -2, v{vC}")
        a(f"v_min_u32 v{vL}, -2, v{vL}")
        self.store(OA, 4, 4, "s13")
        a("v_lshlrev_b32 v4, 7, v7")
        self.store(vC, 2, 4, "s12")
        a.label("L_role")
        self.stamp(3)
        a(f"s_cmp_eq_u32 s{sROLE}, 0")
        a("s_cbranch_scc1 L_done")
        a("s_waitcnt vmcnt(0)") if not self.dry else None
        if self.dry:
            l = a.newlabel("L_nw"); self.skip_if_dry(l); a("s_waitcnt vmcnt(0)"); a.label(l)
        self.check_flags()
        a(f"s_cmp_eq_u32 s{sROLE}, 3")
        a("s_cbranch_scc1 L_ffn")
        a(f"s_cmp_eq_u32 s{sROLE}, 1")
        a("s_cbranch_scc1 L_fin")
        P = RING; ML = RING + 32; A = 32; Y = 16
        a("s_lshr_b32 s12, s3, 2")
        a("s_lshl_b32 s12, s12, 5")
        a(f"s_lshl_b32 s13, s{sHKV}, 2")
        a("s_add_u32 s12, s12, s13")
        a("s_and_b32 s13, s3, 3")
        a("s_add_u32 s12, s12, s13")
        a("s_lshl_b32 vcc_hi, s12, 7")
        a(f"s_add_u32 s{sJ}, vcc_hi, {WS_AM:#x}")
        a("s_lshl_b32 s13, s12, 13")
        a(f"s_add_u32 s13, s13, {WS_AO:#x}")
        a("v_lshl_add_u32 v4, v2, 2, v3")
        a("v_and_b32 v4, 15, v4")
        a("v_lshlrev_b32 v4, 3, v4")
        a("v_lshlrev_b32 v7, 11, v2")
        a("v_lshl_add_u32 v7, v3, 4, v7")
        self.barrier()
        self.prepoll(ML, 2, 4, f"s{sJ}", 8, 16)
        groups = [[(P + 8 * i, 4, 7, "s13", 512 * i), (P + 8 * i + 4, 4, 7, "s13", 512 * i + 256)] for i in range(4)]
        groups.append([(ML, 2, 4, f"s{sJ}", 0)])
        self.poll(groups, 8)
        self.stamp(4)
        a(f"v_mov_b32 v50, v{ML}")
        reduce_row16_add(a, 50, "max")
        a(f"v_sub_f32 v50, v{ML}, v50")
        a("v_exp_f32 v50, v50")
        a("s_nop 0")
        a(f"v_mul_f32 v51, v50, v{ML+1}")
        reduce_row16_add(a, 51)
        a("v_rcp_f32 v52, v51")
        a("s_nop 0")
        a("v_fma_f32 v53, -v51, v52, 1.0")
        a("v_fmac_f32 v52, v53, v52")
        a("v_mul_f32 v50, v50, v52")
        a("v_lshrrev_b32 v4, 1, v2")
        a("v_lshlrev_b32 v4, 7, v4")
        for r in range(8):
            a(f"v_mul_f32_dpp v{A+r}, v50, v{P+r} row_newbcast:0 row_mask:0xf bank_mask:0xf")
        for i in range(1, 4):
            for r in range(8):
                a(f"v_fmac_f32_dpp v{A+r}, v50, v{P+8*i+r} row_newbcast:{i} row_mask:0xf bank_mask:0xf")
        a("v_lshl_add_u32 v4, v3, 3, v4")
        a("v_and_b32 v7, 1, v2")
        for r in range(4):
            a(f"v_permlane32_swap_b32 v{A+r}, v{A+4+r}")
        for r in range(4):
            a(f"v_add_f32 v{A+r}, v{A+r}, v{A+4+r}")
        a("v_lshl_add_u32 v4, v7, 2, v4")
        a("s_lshl_b32 s13, s3, 8")
        for r in range(2):
            a(f"v_permlane16_swap_b32 v{A+r}, v{A+2+r}")
        for r in range(2):
            a(f"v_add_f32 v{A+r}, v{A+r}, v{A+2+r}")
        a("v_add_u32 v4, s13, v4")
        a(f"v_cvt_pk_bf16_f32 v{A}, v{A}, v{A+1}")
        a(f"ds_write_b32 v4, v{A} offset:{LX}")
        a("v_lshrrev_b32 v4, 3, v3")
        a("v_lshlrev_b32 v4, 10, v4")
        a("v_lshl_add_u32 v4, v2, 5, v4")
        a("s_lshl_b32 s13, s3, 7")
        a("v_add_u32 v4, s13, v4")
        a("s_waitcnt lgkmcnt(0)")
        self.barrier()
        a(f"ds_read_b128 {vr(Y,4)}, v4 offset:{LX}")
        a(f"ds_read_b128 {vr(Y+4,4)}, v4 offset:{LX+16}")
        a("s_waitcnt lgkmcnt(0)")
        gemv_mfma(a, Y, 16, W, SEL, 52, 56, 60)
        self.xwave_reduce(60, 8, "L_done")
        for r in range(4):
            a(f"v_min_u32 v{8+r}, -2, v{8+r}")
        self.c_addr(4, 11)
        a(f"s_lshl_b32 s13, s{sHKV}, 12")
        a(f"s_lshl_b32 s12, s{sIDX}, 9")
        a("s_add_u32 s13, s13, s12")
        a(f"s_add_u32 s13, s13, {WS_WP:#x}")
        self.store(8, 4, 4, "s13")
        a("s_branch L_done")
        a.label("L_ffn")
        P = RING; X = 8; Y = 16; F = 32
        a("v_lshlrev_b32 v4, 3, v0")
        a("v_lshlrev_b32 v7, 2, v0")
        l = a.newlabel("L_nx")
        self.skip_if_dry(l)
        a(f"buffer_load_dword v{P+16}, v7, {sr(RX,4)}, 0 offen ;POLL")
        a.label(l)
        a(f"s_mov_b32 s13, {WS_WP:#x}")
        a(f"s_mov_b32 s{sJ}, {WS_WP+0x4000:#x}")
        self.barrier()
        a(f"s_and_b32 s12, s{sIDX}, 7")
        a("s_lshl_b32 s12, s12, 12")
        a("v_mov_b32 v8, s12")
        self.prepoll(P, 1, 8, "s13", 9, 0)
        a("v_add_u32 v69, 0x1000, v4")
        a("v_add_u32 v70, 0x2000, v4")
        a("v_add_u32 v71, 0x3000, v4")
        av = [4, 69, 70, 71]
        groups = [[(P + 2 * k, 2, av[k % 4], "s13" if k < 4 else f"s{sJ}", 0) for k in (2 * i, 2 * i + 1)] for i in range(4)]
        self.poll(groups, 8)
        self.stamp(4)
        a(f"v_add_f32 v8, v{P}, v{P+2}")
        a(f"v_add_f32 v9, v{P+1}, v{P+3}")
        for k in range(2, 8):
            a(f"v_add_f32 v8, v8, v{P+2*k}")
            a(f"v_add_f32 v9, v9, v{P+2*k+1}")
        a("v_cvt_pk_bf16_f32 v8, 0, v8")
        a("v_cvt_pk_bf16_f32 v9, 0, v9")
        a(f"v_lshlrev_b32 v10, 16, v{P+16}")
        a(f"v_and_b32 v11, 0xffff0000, v{P+16}")
        a("v_add_f32 v8, v8, v10")
        a("v_add_f32 v9, v9, v11")
        a("v_cvt_pk_bf16_f32 v8, v8, v9")
        a(f"ds_write_b32 v7, v8 offset:{LX}")
        a(f"v_lshlrev_b32 v7, 5, v{vLane}")
        a("v_lshrrev_b32 v4, 3, v3")
        a("v_lshlrev_b32 v4, 10, v4")
        a("v_lshl_add_u32 v4, v2, 5, v4")
        a("s_lshl_b32 s13, s3, 7")
        a("v_add_u32 v4, s13, v4")
        a("s_waitcnt lgkmcnt(0)")
        self.barrier()
        a(f"ds_read_b128 {vr(X,4)}, v7 offset:{LX}")
        a(f"ds_read_b128 {vr(X+4,4)}, v7 offset:{LX+16}")
        a(f"ds_read_b128 {vr(Y,4)}, v4 offset:{LX}")
        a(f"ds_read_b128 {vr(Y+4,4)}, v4 offset:{LX+16}")
        a("s_waitcnt lgkmcnt(2)")
        ln_stats(a, X, F, 50, 51, 48, 49, 6)
        a("s_waitcnt lgkmcnt(0)")
        ln_apply(a, Y, 8, 50, 51, 48, 49)
        gemv_mfma(a, Y, 16, W, SEL, 52, 56, 60)
        a("v_lshlrev_b32 v4, 4, v0")
        a("s_nop 7")
        a(f"ds_write_b128 v4, {vr(60,4)} offset:{LR}")
        a("v_bfe_u32 v4, v0, 6, 1")
        a("v_lshlrev_b32 v4, 9, v4")
        a(f"v_bfe_u32 v7, v{vLane}, 2, 1")
        a("v_lshl_add_u32 v4, v7, 8, v4")
        a(f"v_lshrrev_b32 v7, 3, v{vLane}")
        a("v_lshl_add_u32 v4, v7, 4, v4")
        a(f"v_and_b32 v7, 3, v{vLane}")
        a("v_lshl_add_u32 v4, v7, 2, v4")
        a("s_waitcnt lgkmcnt(0)")
        self.barrier()
        self.only_waves_below(2, "L_noact")
        G = 8
        for w in range(8):
            a(f"ds_read_b32 v{G+w}, v4 offset:{LR+1024*w}")
            a(f"ds_read_b32 v{G+8+w}, v4 offset:{LR+1024*w+128}")
        a("v_and_b32 v4, 127, v0")
        a("v_lshlrev_b32 v4, 1, v4")
        a("s_waitcnt lgkmcnt(0)")
        for w in range(1, 8):
            a(f"v_add_f32 v{G}, v{G}, v{G+w}")
            a(f"v_add_f32 v{G+8}, v{G+8}, v{G+8+w}")
        a(f"v_cvt_pk_bf16_f32 v{G}, 0, v{G}")
        a(f"v_cvt_pk_bf16_f32 v{G+8}, 0, v{G+8}")
        a(f"v_mul_f32 v{G+1}, 0xbfb8aa3b, v{G}")
        a(f"v_exp_f32 v{G+1}, v{G+1}")
        a("s_nop 0")
        a(f"v_add_f32 v{G+1}, 1.0, v{G+1}")
        a(f"v_rcp_f32 v{G+2}, v{G+1}")
        a("s_nop 0")
        a(f"v_mul_f32 v{G+3}, v{G}, v{G+2}")
        a(f"v_fma_f32 v{G+4}, -v{G+3}, v{G+1}, v{G}")
        a(f"v_fmac_f32 v{G+3}, v{G+4}, v{G+2}")
        a(f"v_cvt_pk_bf16_f32 v{G+3}, 0, v{G+3}")
        a(f"v_mul_f32 v{G+3}, v{G+3}, v{G+8}")
        a(f"v_cvt_pk_bf16_f32 v{G+3}, v{G+3}, v{G+3}")
        a(f"ds_write_b16 v4, v{G+3} offset:{LA}")
        a("s_waitcnt lgkmcnt(0)")
        a.label("L_noact")
        a("v_lshrrev_b32 v4, 3, v3")
        a("v_lshlrev_b32 v4, 7, v4")
        a("v_lshl_add_u32 v4, v2, 4, v4")
        a("s_lshr_b32 s12, s3, 2")
        a("s_lshl_b32 s13, s12, 6")
        a("v_add_u32 v4, s13, v4")
        self.barrier()
        a(f"ds_read_b128 {vr(Y,4)}, v4 offset:{LA}")
        self.c_addr(4, 11)
        a(f"s_lshl_b32 s13, s{sIDX}, 13")
        a("s_lshl_b32 s12, s12, 12")
        a("s_add_u32 s13, s13, s12")
        a("s_and_b32 s12, s3, 3")
        a("s_lshl_b32 s12, s12, 9")
        a("s_add_u32 s13, s13, s12")
        a(f"s_add_u32 s13, s13, {WS_DP:#x}")
        a("s_waitcnt lgkmcnt(0)")
        gemv_mfma(a, Y, 8, WD, SEL, 52, 56, 60)
        a("s_nop 7")
        for r in range(4):
            a(f"v_min_u32 v{60+r}, -2, v{60+r}")
        self.store(60, 4, 4, "s13")
        a("s_branch L_done")
        a.label("L_fin")
        self.only_waves_below(1, "L_done")
        P = RING; H = 8
        a(f"v_and_b32 v7, 7, v{vLane}")
        a("v_lshlrev_b32 v4, 4, v7")
        a("v_add_u32 v69, 0x1000, v4")
        a("v_add_u32 v70, 0x2000, v4")
        a("v_add_u32 v71, 0x3000, v4")
        a("v_lshlrev_b32 v7, 3, v7")
        a("s_lshl_b32 s12, s2, 6")
        l = a.newlabel("L_nx")
        self.skip_if_dry(l)
        a(f"buffer_load_dwordx2 {vr(P+60,2)}, v7, {sr(RX,4)}, s12 offen ;POLL")
        a.label(l)
        a("s_lshl_b32 s12, s2, 7")
        a(f"s_add_u32 s13, s12, {WS_WP:#x}")
        a(f"s_add_u32 s{sJ}, s12, {WS_WP+0x4000:#x}")
        groups = [[(P + 4 * k, 4, av[k % 4], "s13" if k < 4 else f"s{sJ}", 0) for k in (2 * i, 2 * i + 1)] for i in range(4)]
        self.poll(groups, 8, gate="sleep")
        for r in range(4):
            a(f"v_add_f32 v{H+r}, v{P+r}, v{P+4+r}")
        for k in range(2, 8):
            for r in range(4):
                a(f"v_add_f32 v{H+r}, v{H+r}, v{P+4*k+r}")
        for r in range(4):
            a(f"v_cvt_pk_bf16_f32 v{H+r}, 0, v{H+r}")
        a(f"v_lshlrev_b32 v12, 16, v{P+60}")
        a(f"v_and_b32 v13, 0xffff0000, v{P+60}")
        a(f"v_lshlrev_b32 v14, 16, v{P+61}")
        a(f"v_and_b32 v15, 0xffff0000, v{P+61}")
        for r in range(4):
            a(f"v_add_f32 v{H+r}, v{H+r}, v{12+r}")
        for r in range(4):
            a(f"v_cvt_pk_bf16_f32 v{H+r}, 0, v{H+r}")
        a(f"v_lshrrev_b32 v16, 3, v{vLane}")
        a("v_lshl_add_u32 v4, v16, 12, v4")
        for k in range(1, 4):
            a(f"v_add_u32 v{68+k}, {0x8000*k:#x}, v4")
        a("s_lshl_b32 s12, s2, 7")
        a(f"s_add_u32 s13, s12, {WS_DP:#x}")
        a(f"s_add_u32 s{sJ}, s13, 0x20000")
        groups = [[(P + 4 * k, 4, av[k % 4], "s13" if k < 4 else f"s{sJ}", 0) for k in range(2 * i, min(2 * i + 2, 7))] for i in range(4)]
        self.poll(groups, 16)
        self.stamp(4)
        T = 12
        for r in range(4):
            a(f"v_add_f32 v{T+r}, v{P+r}, v{P+4+r}")
        for k in range(2, 7):
            for r in range(4):
                a(f"v_add_f32 v{T+r}, v{T+r}, v{P+4*k+r}")
        a("s_nop 1")
        for r in range(4):
            a(f"v_add_f32_dpp v{T+r}, v{T+r}, v{T+r} row_ror:8 row_mask:0xf bank_mask:0xf")
        for r in range(4):
            a(f"v_mov_b32 v{T+4+r}, v{T+r}")
        a("s_nop 0")
        for r in range(4):
            a(f"v_permlane16_swap_b32 v{T+r}, v{T+4+r}")
        for r in range(4):
            a(f"v_add_f32 v{T+r}, v{T+r}, v{T+4+r}")
        for r in range(4):
            a(f"v_mov_b32 v{T+4+r}, v{T+r}")
        a("s_nop 0")
        for r in range(4):
            a(f"v_permlane32_swap_b32 v{T+r}, v{T+4+r}")
        for r in range(4):
            a(f"v_add_f32 v{T+r}, v{T+r}, v{T+4+r}")
        for r in range(4):
            a(f"v_cvt_pk_bf16_f32 v{T+r}, 0, v{T+r}")
        for r in range(4):
            a(f"v_add_f32 v{H+r}, v{H+r}, v{T+r}")
        if self.pert:
            import struct
            el, dv = self.pert.split(":")
            bits = struct.unpack("<I", struct.pack("<f", float(dv)))[0]
            a("s_cmp_lg_u32 s2, 0")
            a("s_cbranch_scc1 L_nopert")
            a("s_mov_b64 exec, 1")
            a(f"v_add_f32 v{H+int(el)}, {bits:#x}, v{H+int(el)}")
            a("s_mov_b64 exec, -1")
            a.label("L_nopert")
        a(f"v_cvt_pk_bf16_f32 v{H}, v{H}, v{H+1}")
        a(f"v_cvt_pk_bf16_f32 v{H+1}, v{H+2}, v{H+3}")
        a("s_lshl_b32 s12, s2, 6")
        a("s_mov_b64 exec, 0xff")
        self.store(H, 2, 7, "s12", srd=ROUT, flags="")
        a("s_cmp_lg_u32 s2, 0")
        a("s_cbranch_scc1 L_noep")
        a(f"v_mov_b32 v8, s{sTAG}")
        a("v_mov_b32 v4, 0")
        a("s_mov_b64 exec, 1")
        self.store(8, 1, 4, "0", imm=WS_EPOCH, flags="")
        a.label("L_noep")
        a("s_mov_b64 exec, -1")
        a.label("L_done")
        a.raw(";TAIL_END")
        if self.dry:
            a(f"s_cmp_eq_u32 s{sDRY}, 1")
            a("s_cbranch_scc1 L_dryend")
        if self.stamps:
            self.stamp(5)
            a("s_getreg_b32 s12, hwreg(HW_REG_XCC_ID)")
            a("s_waitcnt lgkmcnt(0)")
            a(f"v_mov_b32 v8, s{sST+12}")
            a(f"v_mov_b32 v9, s{sST+2}")
            a(f"v_mov_b32 v10, s{sST+4}")
            a(f"v_mov_b32 v11, s{sST+8}")
            a("v_mov_b32 v4, 0")
            a("s_lshl_b32 s13, s2, 3")
            a("s_add_u32 s13, s13, s3")
            a("s_lshl_b32 s13, s13, 4")
            a(f"s_add_u32 s13, s13, {STAMP+0x8000:#x}")
            a("s_mov_b64 exec, 1")
            a(f"buffer_store_dwordx4 v[8:11], v4, {sr(RWS,4)}, s13 offen")
            a("s_mov_b64 exec, -1")
            a("s_cmp_lg_u32 s3, 1")
            a("s_cbranch_scc1 L_st0")
            a(f"v_mov_b32 v8, s{sST+12}")
            a(f"v_mov_b32 v9, s{sST+4}")
            a("v_mov_b32 v4, 0")
            a("s_lshl_b32 s13, s2, 3")
            a(f"s_add_u32 s13, s13, {STAMP+0x4000:#x}")
            a("s_mov_b64 exec, 1")
            a(f"buffer_store_dwordx2 v[8:9], v4, {sr(RWS,4)}, s13 offen")
            a.label("L_st0")
            a("s_cmp_lg_u32 s3, 0")
            a("s_cbranch_scc1 L_exit")
            for k in range(6):
                a(f"v_mov_b32 v{8+k}, s{sST+2*k}")
            a("v_mov_b32 v14, s12")
            a(f"v_mov_b32 v15, s{sROLE}")
            a("v_mov_b32 v4, 0")
            a("s_lshl_b32 s13, s2, 5")
            a(f"s_add_u32 s13, s13, {STAMP:#x}")
            a("s_mov_b64 exec, 1")
            a(f"buffer_store_dwordx4 v[8:11], v4, {sr(RWS,4)}, s13 offen")
            a(f"buffer_store_dwordx4 v[12:15], v4, {sr(RWS,4)}, s13 offen offset:16")
        a.label("L_exit")
        a("s_endpgm")
        self.check_tail()
        out = HEADER + f"; @launch grid=(256,1,1) block=(512,1,1) lds={LDS_BYTES}\n"
        out += '.amdgcn_target "amdgcn-amd-amdhsa--gfx950"\n.text\n' + a.text()
        out += '.section .rodata,"a"\n' + kernel_desc(name, NVGPR)
        return out

    def check_tail(self):
        on = False
        for ln in self.a.lines:
            if ln.startswith(";TAIL_BEGIN"): on = True; continue
            if ln.startswith(";TAIL_END"): on = False; continue
            if not on or ";POLL" in ln: continue
            s = ln.strip()
            m = re.match(r"(v_\w+|ds_read\w+|buffer_load\w+)\s+(v\[(\d+):(\d+)\]|v(\d+))", s)
            if not m or s.startswith("v_cmp"): continue
            regs = [int(m.group(5))] if m.group(5) else list(range(int(m.group(3)), int(m.group(4)) + 1))
            if "swap" in s:
                regs.append(int(re.findall(r"v(\d+)", s.split(",")[1])[0]))
            for r in regs:
                assert r in (4, 7) or 8 <= r <= 71, f"tail writes v{r}: {s}"

if __name__ == "__main__":
    import argparse
    ap = argparse.ArgumentParser()
    ap.add_argument("-o", default="fused.s")
    ap.add_argument("--stamps", action="store_true")
    ap.add_argument("--nodry", action="store_true")
    ap.add_argument("--pace", action="store_true")
    ap.add_argument("--qfirst", type=int, default=2)
    ap.add_argument("--ne", type=int, default=3)
    ap.add_argument("--pd", type=int, default=1)
    ap.add_argument("--notail", action="store_true")
    ap.add_argument("--noq", action="store_true")
    ap.add_argument("--qbar", action="store_true")
    ap.add_argument("--prog", action="store_true")
    ap.add_argument("--nopoll", action="store_true")
    ap.add_argument("--noprod", action="store_true")
    ap.add_argument("--noclean", action="store_true")
    ap.add_argument("--qsleep", type=int, default=0)
    ap.add_argument("--pool", type=int, default=256)
    ap.add_argument("--look", type=int, default=8)
    ap.add_argument("--chunk", type=int, default=4)
    ap.add_argument("--notr", action="store_true")
    ap.add_argument("--rot", type=int, default=0)
    ap.add_argument("--pert", default=None)
    ap.add_argument("--dwo", type=int, default=16)
    ap.add_argument("--dffn", type=int, default=24)
    x = ap.parse_args()
    open(x.o, "w").write(Gen(stamps=x.stamps, dry=False, pace=x.pace, qfirst=x.qfirst, ne=x.ne, pd=x.pd, notail=x.notail, noq=x.noq, qbar=x.qbar, prog=x.prog, nopoll=x.nopoll, noprod=x.noprod, noclean=x.noclean, qsleep=x.qsleep, pool=x.pool, look=x.look, chunk=x.chunk, rot=x.rot, pert=x.pert, transpose=not x.notr, dwo=x.dwo, dffn=x.dffn).gen())
```

```python
import sys, re
from gen_common import *

WS_EPOCH = 0x0
WS_FLAG = 0x1000
WS_QP = 0x100000
WS_POOL = 0x18000
WS_QG = 0x2000
WS_AM = 0xA000
WS_WP = 0xC000
WS_DP = 0x20000
WS_AO = 0x80000
WS_END = 0x180000
STAMP = 0x200000
TAGK = 0x9E3779B9

sWG, sWV, sL2E, sSC, sMK = 2, 3, 4, 5, 6
sHKV, sB, sS, sJ = 8, 9, 10, 11
sOF0, sOF1 = 14, 15
RK, RV, RW1, RWS, RW2, RWD, RX, ROUT = 40, 44, 48, 52, 56, 60, 64, 68
sTAG, sROLE, sDRY, sTO, sIDX = 72, 73, 74, 75, 76
sM = 78
sST = 88
sE = 16
vLane, vG, vI = 1, 2, 3
vKo, vVo = 5, 6
Q = 8; O0, O1 = 24, 28; AW = 32; S = 52; R = 56
vC, vL, vAa, vAo, vT, vU, vM0, vM1, vCn = 60, 61, 62, 63, 64, 65, 66, 67, 68
vTk, vTa, vT1 = 69, 70, 71
RING = 72
W = 136; WD = 200; SEL = 232; FL = 240
NVGPR = 248
D = 2
NW = 8
LQ = 0
LO = 1024; LC = LO + NW * 2048; LL = LC + 128
LX = 1024
LR = 3072
LA = 11264
LCNT = LL + 128
LQF = LCNT + 4
LCH = LCNT + 16
LDS_BYTES = LCH + 512
EMPTY = 0xFFFFFFFE
INVALID = 0x40000000
sSLAB, sT0, sSB = 22, 23, 24
vPF = 244
vRQ = 245
sPD = 30


class Gen:
    def __init__(self, stamps=False, dry=True, pol="nt", pace=False, dwo=16, dffn=24, qfirst=2, ne=3, pd=1, notail=False, noq=False, qbar=False, prog=False, nopoll=False, noprod=False, noclean=False, qsleep=0, pool=256, look=8, transpose=True, chunk=4, rot=0, pert=None, dbgst=False):
        self.a = Asm(); self.stamps = stamps; self.dry = dry; self.pol = pol; self.pace = pace
        self.dwo = dwo; self.dffn = dffn; self.qfirst = qfirst; self.ne = ne; self.pd = pd; self.notail = notail; self.noq = noq; self.qbar = qbar; self.prog = prog; self.nopoll = nopoll; self.noprod = noprod; self.noclean = noclean; self.qsleep = qsleep; self.pool = pool; self.look = look; self.transpose = transpose; self.chunk = chunk; self.rot = rot; self.pert = pert; self.dbgst = dbgst; self.cshift = 12 + chunk.bit_length() - 1
        self.nst = 0

    def stamp(self, k):
        if self.stamps:
            self.a(f"s_memrealtime s[{sST+2*k}:{sST+2*k+1}]")

    def skip_if_dry(self, lab):
        if self.dry:
            self.a(f"s_cmp_eq_u32 s{sDRY}, 1")
            self.a(f"s_cbranch_scc1 {lab}")

    def barrier(self):
        a = self.a
        if self.dry:
            l = a.newlabel("L_nb")
            self.skip_if_dry(l)
            a("s_barrier")
            a.label(l)
        else:
            a("s_barrier")

    def only_waves_below(self, n, lab):
        a = self.a
        if self.dry:
            a(f"s_cmp_ge_u32 s{sIDX+1}, {n}")
        else:
            a(f"s_cmp_ge_u32 s{sWV}, {n}")
        a(f"s_cbranch_scc1 {lab}")

    def store(self, data, n, voff, soff, srd=RWS, imm=0, flags="sc1"):
        a = self.a
        op = {1: "dword", 2: "dwordx2", 4: "dwordx4"}[n]
        d = f"v{data}" if n == 1 else vr(data, n)
        l = None
        if self.dry:
            l = a.newlabel("L_ns"); self.skip_if_dry(l)
        a(f"buffer_store_{op} {d}, v{voff}, {sr(srd,4)}, {soff} offen offset:{imm} {flags}")
        if l: a.label(l)

    def poll(self, groups, tmp, bad="-1", words=None, gate=None, tail=True):
        a = self.a
        done = a.newlabel("L_pdone"); top = a.newlabel("L_poll")
        if tail: self.skip_if_dry(done)
        for k in range(len(groups)):
            a(f"s_mov_b64 s[{sM+2*k}:{sM+2*k+1}], -1")
        a.label(top)
        for k, grp in enumerate(groups):
            sk = a.newlabel("L_psk")
            a(f"s_mov_b64 exec, s[{sM+2*k}:{sM+2*k+1}]")
            a(f"s_cbranch_execz {sk}")
            for (dst, n, voff, soff, imm) in grp:
                op = {1: "dword", 2: "dwordx2", 4: "dwordx4"}[n]
                d = f"v{dst}" if n == 1 else vr(dst, n)
                a(f"buffer_load_{op} {d}, v{voff}, {sr(RWS,4)}, {soff} offen offset:{imm} sc1 ;POLL")
            a.label(sk)
        a("s_mov_b64 exec, -1")
        a("s_waitcnt vmcnt(0)")
        for k, grp in enumerate(groups):
            if words is None:
                ws = [dst + i for (dst, n, _, _, _) in grp for i in range(n)]
                a(f"v_max_u32 v{tmp}, v{ws[0]}, v{ws[1]}")
                i = 2
                while i < len(ws):
                    if i + 1 < len(ws):
                        a(f"v_max3_u32 v{tmp}, v{tmp}, v{ws[i]}, v{ws[i+1]}"); i += 2
                    else:
                        a(f"v_max_u32 v{tmp}, v{tmp}, v{ws[i]}"); i += 1
                a(f"v_cmp_eq_u32 s[{sM+2*k}:{sM+2*k+1}], -1, v{tmp}")
            else:
                ws = words[k]
                a(f"v_xor_b32 v{tmp}, s{sTAG}, v{ws[0]}")
                for w in ws[1:]:
                    a(f"v_xor_b32 v{tmp+1}, s{sTAG}, v{w}")
                    a(f"v_or_b32 v{tmp}, v{tmp}, v{tmp+1}")
                a(f"v_cmp_ne_u32 s[{sM+2*k}:{sM+2*k+1}], 0, v{tmp}")
        a("s_nop 0")
        a(f"s_mov_b64 vcc, s[{sM}:{sM+1}]")
        for k in range(1, len(groups)):
            a(f"s_or_b64 vcc, vcc, s[{sM+2*k}:{sM+2*k+1}]")
        a(f"s_cmp_eq_u64 vcc, 0")
        a(f"s_cbranch_scc1 {done}")
        a(f"s_sub_u32 s{sTO}, s{sTO}, 1")
        a(f"s_cbranch_scc1 L_exit")
        if gate == "sleep":
            a("s_sleep 8")
        elif not tail and self.qsleep:
            a(f"s_sleep {self.qsleep}")
        a(f"s_branch {top}")
        a.label(done)

    def prepoll(self, dst, n, voff, soff, tmp, maxbad):
        a = self.a
        done = a.newlabel("L_gdone"); top = a.newlabel("L_gate")
        self.skip_if_dry(done)
        a.label(top)
        op = {1: "dword", 2: "dwordx2", 4: "dwordx4"}[n]
        d = f"v{dst}" if n == 1 else vr(dst, n)
        a(f"buffer_load_{op} {d}, v{voff}, {sr(RWS,4)}, {soff} offen sc1 ;POLL")
        a("s_waitcnt vmcnt(0)")
        a(f"v_cmp_eq_u32 vcc, -1, v{dst}")
        a("s_nop 0")
        a(f"s_bcnt1_i32_b64 s12, vcc")
        a(f"s_cmp_le_u32 s12, {maxbad}")
        a(f"s_cbranch_scc1 {done}")
        a(f"s_sub_u32 s{sTO}, s{sTO}, 1")
        a(f"s_cbranch_scc1 L_exit")
        a("s_sleep 8")
        a(f"s_branch {top}")
        a.label(done)

    def check_flags(self):
        a = self.a
        ok = a.newlabel("L_flok")
        self.skip_if_dry(ok)
        a(f"v_xor_b32 v8, s{sTAG}, v{FL}")
        for i in range(1, 4):
            a(f"v_xor_b32 v9, s{sTAG}, v{FL+i}")
            a(f"v_or_b32 v8, v8, v9")
        a("v_cmp_ne_u32 vcc, 0, v8")
        a("s_nop 0")
        a("s_cmp_eq_u64 vcc, 0")
        a(f"s_cbranch_scc1 {ok}")
        a(f"v_lshlrev_b32 v4, 4, v{vLane}")
        a(f"s_mov_b32 s13, {WS_FLAG:#x}")
        self.poll([[(FL, 4, 4, "s13", 0)]], 8, words=[[FL, FL + 1, FL + 2, FL + 3]], gate="sleep")
        a.label(ok)

    def ldK(self, slot):
        so = sOF0 + slot if slot < 2 else sE + slot - 2
        for j in range(4):
            self.a(f"buffer_load_dwordx4 {vr(RING+32*slot+4*j,4)}, v{vKo}, {sr(RK,4)}, s{so} offen offset:{j*64} {self.pol}")
    def ldV(self, slot):
        so = sOF0 + slot if slot < 2 else sE + slot - 2
        for t in range(4):
            self.a(f"buffer_load_dwordx4 {vr(RING+32*slot+16+4*t,4)}, v{vVo}, {sr(RV,4)}, s{so} offen offset:{t*1024} {self.pol}")

    def unit(self, d):
        a = self.a
        K = RING + 32 * d; V = K + 16
        ring = d < 2
        if ring:
            a(f"s_cmp_ge_u32 s{sOF0+d}, s{RK+2}")
            a("s_cbranch_scc1 L_epi")
            a("s_mov_b64 exec, 1")
            a(f"ds_add_rtn_u32 v{vTk}, v{vTa}, v{vT1}")
            a("s_mov_b64 exec, -1")
            a(f"s_waitcnt vmcnt({8*D-4})")
        else:
            a(f"s_cmp_ge_u32 s{sE+d-2}, s{RK+2}")
            a("s_cbranch_scc1 L_loop")
        for j in range(4):
            c = "0" if j == 0 else vr(S, 4)
            a(f"v_mfma_f32_16x16x32_bf16 {vr(S,4)}, {vr(K+4*j,4)}, {vr(Q+4*j,4)}, {c}")
            if j == 1 and ring:
                a("s_waitcnt lgkmcnt(0)")
                a(f"v_readfirstlane_b32 s{sOF0+d}, v{vTk}")
        if ring:
            a(f"s_cmp_ge_u32 s{sOF0+d}, s{sT0}")
            a(f"s_cbranch_scc1 L_slow{d}")
            a(f"s_add_u32 s{sOF0+d}, s{sOF0+d}, s{sSLAB}")
            a(f"s_and_b32 s{sOF0+d}, s{sOF0+d}, 0x7fffff")
            a.label(f"L_back{d}")
            self.ldK(d)
            a("s_nop 0")
        else:
            a("s_nop 7")
        for r in range(4):
            a(f"v_cvt_pk_bf16_f32 v{R+r}, 0, v{S+r}")
        for r in range(4):
            a(f"v_mul_f32 v{R+r}, s{sSC}, v{R+r}")
        for r in range(4):
            a(f"v_cvt_pk_bf16_f32 v{R+r}, 0, v{R+r}")
        a(f"v_max3_f32 v{vT}, v{R}, v{R+1}, v{R+2}")
        a(f"v_max_f32 v{vT}, v{vT}, v{R+3}")
        xhalf32(a, vT, vU, "max")
        xrow16(a, vT, vU, "max")
        a(f"v_mul_f32 v{vT}, s{sL2E}, v{vT}")
        a(f"v_max_f32 v{vCn}, v{vC}, v{vT}")
        a(f"v_sub_f32 v{vAa}, v{vC}, v{vCn}")
        a(f"v_exp_f32 v{vAa}, v{vAa}")
        for r in range(4):
            a(f"v_fma_f32 v{R+r}, v{R+r}, s{sL2E}, -v{vCn}")
        a(f"v_mov_b32 v{vC}, v{vCn}")
        for r in range(4):
            a(f"v_exp_f32 v{R+r}, v{R+r}")
        for g in range(4):
            a(f"v_mov_b32_dpp v{vAo}, v{vAa} row_newbcast:{4*g} row_mask:{1<<g:#x} bank_mask:0xf")
        a(f"v_mul_f32 v{vL}, v{vL}, v{vAa}")
        for t in range(4):
            a(f"v_cvt_pk_bf16_f32 v{vT}, v{R+t}, v{R+t}")
            a(f"v_and_b32 v{AW+4*t+2}, v{vT}, v{vM0}")
            a(f"v_and_b32 v{AW+4*t+3}, v{vT}, v{vM1}")
        for r in range(8):
            a(f"v_mul_f32 v{O0+r}, v{O0+r}, v{vAo}")
        a(f"v_add_f32 v{R}, v{R}, v{R+1}")
        a(f"v_add_f32 v{R+2}, v{R+2}, v{R+3}")
        a(f"v_add_f32 v{vL}, v{vL}, v{R}")
        a(f"v_add_f32 v{vL}, v{vL}, v{R+2}")
        if ring:
            a(f"s_waitcnt vmcnt({8*D-4})")
            a(f"s_cmp_lg_u32 s{sPD+1-d}, -1")
            a(f"s_cbranch_scc1 L_dlv{1-d}")
            a.label(f"L_dlb{1-d}")
        for t in range(4):
            a(f"v_mfma_f32_16x16x32_bf16 {vr(O0,4)}, {vr(AW+4*t+2,4)}, {vr(V+4*t,4)}, {vr(O0,4)}")
            a(f"v_mfma_f32_16x16x32_bf16 {vr(O1,4)}, {vr(AW+4*t,4)}, {vr(V+4*t,4)}, {vr(O1,4)}")
        if ring: self.ldV(d)
        if ring: self.proghook()

    def proghook(self):
        a = self.a
        if not self.prog: return
        l = a.newlabel("L_np")
        a(f"v_readfirstlane_b32 s28, v{vTk}")
        a("s_and_b32 s12, s28, 0x7000")
        a(f"s_cbranch_scc1 {l}")
        a("s_memrealtime s[26:27]")
        a(f"s_lshr_b32 s12, s28, 13")
        a("s_lshl_b32 s13, s2, 7")
        a("s_add_u32 s13, s13, s12")
        a(f"s_add_u32 s13, s13, {STAMP+0x20000:#x}")
        a("s_waitcnt lgkmcnt(0)")
        a("v_mov_b32 v7, s26")
        a("v_mov_b32 v4, 0")
        a("s_mov_b64 exec, 1")
        a(f"buffer_store_dword v7, v4, {sr(RWS,4)}, s13 offen")
        a("s_mov_b64 exec, -1")
        a.label(l)


    def deliver(self, d):
        a = self.a
        a("s_mov_b64 exec, 1")
        a(f"v_cmp_gt_u32 vcc, {self.pool*4096:#x}, v{vRQ+d}")
        a(f"v_add_u32 v7, s25, v{vRQ+d}")
        a("v_and_b32 v7, 0x7fffff, v7")
        a(f"v_mov_b32 v4, {INVALID:#x}")
        a("v_cndmask_b32 v7, v4, v7, vcc")
        a(f"v_mov_b32 v4, s{sPD+d}")
        a(f"ds_write_b32 v4, v7 offset:{LCH}")
        a("s_mov_b64 exec, -1")
        a(f"s_mov_b32 s{sPD+d}, -1")

    def flush(self):
        a = self.a
        for d in range(2):
            l = a.newlabel("L_fl")
            a(f"s_cmp_eq_u32 s{sPD+d}, -1")
            a(f"s_cbranch_scc1 {l}")
            a("s_waitcnt vmcnt(0)")
            self.deliver(d)
            a.label(l)

    def slow(self, t, back, d):
        a = self.a
        noreq = a.newlabel("L_nr"); pool = a.newlabel("L_pl"); spin = a.newlabel("L_sp"); okf = a.newlabel("L_okf"); chk = a.newlabel("L_chk")
        a(f"s_sub_u32 s12, s{t}, s{sT0}")
        a(f"s_and_b32 s13, s12, {self.chunk*4096-1:#x}")
        a(f"s_cbranch_scc1 {noreq}")
        self.flush()
        a(f"s_lshr_b32 s{sPD+d}, s12, {self.cshift-2}")
        a("s_and_b32 s13, s2, 15")
        a.label(chk)
        a(f"v_cmp_ne_u32 vcc, s{sTAG}, v{vPF}")
        a("s_nop 0")
        a("s_cmp_eq_u64 vcc, 0")
        a(f"s_cbranch_scc1 {okf}")
        a(f"s_sub_u32 s{sTO}, s{sTO}, 1")
        a("s_cbranch_scc1 L_exit")
        a("s_lshl_b32 vcc_lo, s13, 2")
        a("v_mov_b32 v4, vcc_lo")
        a(f"v_add_u32 v4, {WS_FLAG:#x}, v4")
        a(f"buffer_load_dword v{vPF}, v4, {sr(RWS,4)}, 0 offen sc1")
        a("s_waitcnt vmcnt(0)")
        a(f"s_branch {chk}")
        a.label(okf)
        a("s_lshl_b32 s13, s13, 8")
        a(f"s_add_u32 s13, s13, {WS_POOL:#x}")
        a("v_mov_b32 v4, 0")
        a(f"v_mov_b32 v{vRQ+d}, {self.chunk*4096:#x}")
        a("s_mov_b64 exec, 1")
        a(f"buffer_atomic_add v{vRQ+d}, v4, {sr(RWS,4)}, s13 offen sc0 sc1")
        a("s_mov_b64 exec, -1")
        a.label(noreq)
        a(f"s_cmp_ge_u32 s{t}, s{sSB}")
        a(f"s_cbranch_scc1 {pool}")
        a(f"s_add_u32 s{t}, s{t}, s{sSLAB}")
        a(f"s_and_b32 s{t}, s{t}, 0x7fffff")
        a(f"s_branch {back}")
        a.label(pool)
        a(f"s_sub_u32 s{t}, s{t}, s{sSB}")
        a(f"s_lshr_b32 s12, s{t}, {self.cshift}")
        a("s_lshl_b32 s13, s12, 2")
        a(f"s_and_b32 s{t}, s{t}, {self.chunk*4096-1:#x}")
        a("v_mov_b32 v4, s13")
        a(f"ds_read_b32 v7, v4 offset:{LCH}")
        a("s_waitcnt lgkmcnt(0)")
        a("v_readfirstlane_b32 s12, v7")
        a(f"s_cmp_lg_u32 s12, {EMPTY:#x}")
        a(f"s_cbranch_scc1 {spin}_ok")
        self.flush()
        a.label(spin)
        a("v_mov_b32 v4, s13")
        a(f"ds_read_b32 v7, v4 offset:{LCH}")
        a("s_waitcnt lgkmcnt(0)")
        a("v_readfirstlane_b32 s12, v7")
        a(f"s_sub_u32 s{sTO}, s{sTO}, 1")
        a("s_cbranch_scc1 L_exit")
        a(f"s_cmp_eq_u32 s12, {EMPTY:#x}")
        a(f"s_cbranch_scc1 {spin}")
        a.label(f"{spin}_ok")
        a(f"s_add_u32 s{t}, s{t}, s12")
        a(f"s_branch {back}")

    def ao_addr(self):
        a = self.a
        a(f"s_lshl_b32 s12, s{sB}, 5")
        a(f"s_lshl_b32 s13, s{sHKV}, 2")
        a("s_add_u32 s12, s12, s13")
        a("s_lshl_b32 s13, s12, 13")
        a(f"s_lshl_b32 vcc_lo, s{sS}, 9")
        a("s_add_u32 s13, s13, vcc_lo")
        a(f"s_add_u32 s13, s13, {WS_AO:#x}")
        a("s_lshl_b32 s12, s12, 7")
        a(f"s_lshl_b32 vcc_lo, s{sS}, 3")
        a("s_add_u32 s12, s12, vcc_lo")
        a(f"s_add_u32 s12, s12, {WS_AM:#x}")

    def c_addr(self, v, bshift):
        a = self.a
        a(f"v_lshrrev_b32 v{v}, 1, v{vG}")
        a(f"v_lshlrev_b32 v{v}, {bshift}, v{v}")
        a(f"v_lshl_add_u32 v{v}, v{vI}, 5, v{v}")
        a(f"v_and_b32 v7, 1, v{vG}")
        a(f"v_lshl_add_u32 v{v}, v7, 4, v{v}")

    def xwave_reduce(self, ACC, T, done):
        a = self.a
        a("v_lshlrev_b32 v4, 4, v0")
        a("s_nop 7")
        a(f"ds_write_b128 v4, {vr(ACC,4)} offset:{LR}")
        a("s_waitcnt lgkmcnt(0)")
        self.barrier()
        self.only_waves_below(1, done)
        a(f"v_lshlrev_b32 v4, 4, v{vLane}")
        for w in range(8):
            a(f"ds_read_b128 {vr(T+4*w,4)}, v4 offset:{LR+1024*w}")
        for w in range(1, 8):
            a(f"s_waitcnt lgkmcnt({7-w})")
            for r in range(4):
                a(f"v_add_f32 v{T+r}, v{T+r}, v{T+4*w+r}")

    def gen(self):
        a = self.a
        name = NAME + "_kernel"
        kernel_begin(a, name)
        a("s_cmp_ge_u32 s2, 256")
        a("s_cbranch_scc1 L_exit")
        self.stamp(0)
        load_ptrs(a)
        if self.transpose:
            a("s_and_b32 s3, s2, 15")
            a("s_lshl_b32 s3, s3, 4")
            a("s_lshr_b32 s2, s2, 4")
            a("s_or_b32 s2, s2, s3")
        a("v_and_b32 v1, 63, v0")
        a("v_lshrrev_b32 v2, 4, v1")
        a("v_and_b32 v3, 15, v0")
        a("v_lshrrev_b32 v4, 6, v0")
        a("s_mov_b32 s6, 0xff00ff00")
        a("s_mov_b32 s7, 0xff00ff00")
        a("v_readfirstlane_b32 s3, v4")
        a(f"s_and_b32 s{sHKV}, s2, 7")
        a(f"s_bfe_u32 s{sB}, s2, 0x10003")
        a(f"s_lshr_b32 s{sS}, s2, 4")
        a(f"s_lshr_b32 s{sJ}, s2, 3")
        a(f"s_mov_b32 s{sL2E}, {LOG2E:#x}")
        a(f"s_mov_b32 s{sSC}, {SCALE:#x}")
        a(f"s_mov_b32 s{sDRY}, 0")
        a(f"s_mov_b32 s{sTO}, 0x40000")
        a(f"s_mov_b32 s{sROLE}, 0")
        a("s_cmp_lt_u32 s2, 92")
        a(f"s_cselect_b32 s{sROLE}, 3, s{sROLE}")
        a("s_cmp_lt_u32 s2, 64")
        a(f"s_cselect_b32 s{sROLE}, 2, s{sROLE}")
        a("s_cmp_lt_u32 s2, 32")
        a(f"s_cselect_b32 s{sROLE}, 1, s{sROLE}")
        a(f"s_and_b32 s{sIDX}, s{sJ}, 3")
        if self.notail: a(f"s_mov_b32 s{sROLE}, 0")
        ST = 2048 - self.pool
        NA = -(-(ST + 2 * self.dwo + 2 * self.dffn) // 16); NB = -(-(ST + 2 * self.dwo + self.dffn) // 16)
        a("s_and_b32 s12, s2, 12")
        a("s_cmp_eq_u32 s12, 12")
        a(f"s_mov_b32 s{sM+4}, {NA}")
        a(f"s_cmov_b32 s{sM+4}, {NB}")
        a(f"s_cselect_b32 s{sM+5}, 1, 2")
        for k in range(2):
            a(f"s_add_u32 s12, s{sS}, {k}")
            a(f"s_mul_i32 s{sM+k}, s12, s{sM+4}")
            a("s_sub_u32 s13, s12, 2")
            a("s_max_i32 s13, s13, 0")
            a("s_min_i32 s13, s13, 2")
            a(f"s_mul_i32 s13, s13, {self.dwo}")
            a(f"s_sub_u32 s{sM+k}, s{sM+k}, s13")
            a("s_sub_u32 s13, s12, 4")
            a("s_max_i32 s13, s13, 0")
            a(f"s_min_i32 s13, s13, s{sM+5}")
            a(f"s_mul_i32 s13, s13, {self.dffn}")
            a(f"s_sub_u32 s{sM+k}, s{sM+k}, s13")
        a(f"s_min_u32 s{sM+1}, s{sM+1}, {ST}")
        a(f"s_sub_u32 s{sM+1}, s{sM+1}, s{sM}")
        a(f"s_lshl_b32 s{sM+1}, s{sM+1}, 12")
        a(f"s_lshl_b32 s{sM+2}, s{sM}, 12")
        a(f"s_lshl_b32 s13, s{sB}, 3")
        a(f"s_add_u32 s13, s13, s{sHKV}")
        a(f"s_lshl_b32 s{sM}, s13, 23")
        a("v_and_b32 v5, 3, v3")
        a("v_lshlrev_b32 v5, 10, v5")
        a("v_lshrrev_b32 v6, 2, v3")
        a("v_lshl_add_u32 v5, v6, 8, v5")
        a("v_lshl_add_u32 v5, v2, 4, v5")
        a("v_lshlrev_b32 v6, 8, v2")
        a("v_lshl_add_u32 v6, v3, 4, v6")
        a("s_cmp_ge_u32 s3, 4")
        a("s_cbranch_scc1 L_noprio")
        a("s_setprio 3")
        a.label("L_noprio")
        a(f"s_mov_b32 s{sIDX+1}, s3")
        a(f"v_mov_b32 v{vTa}, {LCNT}")
        a(f"v_mov_b32 v{vT1}, 0x1000")
        a("v_mov_b32 v8, 0")
        a(f"v_mov_b32 v9, {1 if self.noq else 0}")
        a(f"ds_write_b64 v{vTa}, v[8:9]")
        a(f"v_mov_b32 v10, {EMPTY:#x}")
        a(f"v_mov_b32 v11, {EMPTY:#x}")
        a(f"v_lshlrev_b32 v4, 3, v{vLane}")
        a(f"ds_write_b64 v4, v[10:11] offset:{LCH}")
        a("s_waitcnt lgkmcnt(0)")
        a(f"s_load_dword s{sTAG}, s[{P_WS}:{P_WS+1}], {WS_EPOCH}")
        make_srd(a, RX, P_X, 2048)
        X = 8; Y = 16; F = 32
        for rr, p in ((RK, P_K), (RV, P_V)):
            a(f"s_add_u32 s{rr}, s{p}, s{sM}")
            a(f"s_addc_u32 s{rr+1}, s{p+1}, 0")
            a(f"s_and_b32 s{rr+1}, s{rr+1}, 0xffff")
            a(f"s_mov_b32 s{rr+2}, 0x800000")
            a(f"s_mov_b32 s{rr+3}, 0x00020000")
        make_srd(a, RWS, P_WS, 0x400000 if self.stamps else WS_END)
        a(f"s_mov_b32 s20, s{sM+2}")
        a(f"s_mov_b32 s21, s{sM+1}")
        if self.noprod:
            a("s_barrier")
            a("s_branch L_noqld")
        a("s_cmp_lt_u32 s2, 128")
        a("s_cbranch_scc1 L_noprod")
        a("s_cmp_ge_u32 s3, 2")
        a("s_cbranch_scc1 L_noprod")
        make_srd(a, RW1, P_WQ, 512 * 4096 * 2)
        a(f"v_lshlrev_b32 v4, 5, v{vLane}")
        a(f"buffer_load_dwordx4 {vr(X,4)}, v4, {sr(RX,4)}, 0 offen")
        a(f"buffer_load_dwordx4 {vr(X+4,4)}, v4, {sr(RX,4)}, 0 offen offset:16")
        a("v_lshrrev_b32 v4, 3, v3")
        a("v_lshlrev_b32 v4, 10, v4")
        a("v_lshl_add_u32 v4, v2, 5, v4")
        a(f"s_and_b32 s{sJ}, s2, 31")
        a("s_bfe_u32 s13, s2, 0x20005")
        a("s_lshl_b32 s13, s13, 1")
        a(f"s_add_u32 s{sM+2}, s13, s3")
        a(f"s_lshl_b32 s12, s{sM+2}, 7")
        a(f"buffer_load_dwordx4 {vr(Y,4)}, v4, {sr(RX,4)}, s12 offen")
        a(f"buffer_load_dwordx4 {vr(Y+4,4)}, v4, {sr(RX,4)}, s12 offen offset:16")
        a(f"s_lshl_b32 s13, s{sM+2}, 19")
        a(f"s_lshl_b32 s12, s{sJ}, 8")
        a("s_add_u32 s13, s13, s12")
        a("v_lshlrev_b32 v4, 17, v2")
        a("v_lshl_add_u32 v4, v3, 4, v4")
        for t in range(16):
            a(f"buffer_load_dwordx4 {vr(RING+4*t,4)}, v4, {sr(RW1,4)}, s13 offen nt")
            a("s_add_u32 s13, s13, 8192")
        a("s_barrier")
        make_sels(a, SEL, 3, 48, 49, 15)
        a("v_lshrrev_b32 v4, 1, v2")
        a("v_lshlrev_b32 v4, 13, v4")
        a("v_lshl_add_u32 v4, v3, 6, v4")
        a("v_and_b32 v7, 1, v2")
        a("v_lshl_add_u32 v4, v7, 5, v4")
        a(f"s_lshl_b32 s13, s{sJ}, 14")
        a(f"s_lshl_b32 s12, s{sM+2}, 10")
        a("s_add_u32 s13, s13, s12")
        a(f"s_add_u32 s13, s13, {WS_QP:#x}")
        a("s_waitcnt vmcnt(16)")
        ln_stats(a, X, F, 50, 51, 48, 49, 6)
        ln_apply(a, Y, 8, 50, 51, 48, 49)
        a("s_waitcnt lgkmcnt(0)")
        a(f"s_add_u32 s12, s{sTAG}, {TAGK:#x}")
        for r in range(4):
            a(f"v_mov_b32 v{9+2*r}, s12")
        gemv_mfma(a, Y, 16, RING, SEL, 52, 56, 60, wait=lambda t: a(f"s_waitcnt vmcnt({15-t})"))
        a("s_nop 7")
        for r in range(4):
            a(f"v_mov_b32 v{8+2*r}, v{60+r}")
        a(f"buffer_store_dwordx4 v[8:11], v4, {sr(RWS,4)}, s13 offen sc1")
        a(f"buffer_store_dwordx4 v[12:15], v4, {sr(RWS,4)}, s13 offen offset:16 sc1")
        self.stamp(6)
        a("s_branch L_noqld")
        a.label("L_noprod")
        a("s_barrier")
        a("s_cmp_ge_u32 s2, 32")
        a("s_cbranch_scc1 L_noqld")
        a("s_cmp_ge_u32 s3, 2")
        a("s_cbranch_scc1 L_noqld")
        a(f"v_lshlrev_b32 v4, 4, v{vLane}")
        a("s_lshl_b32 s13, s2, 14")
        a("s_lshl_b32 s12, s3, 13")
        a("s_add_u32 s13, s13, s12")
        a(f"s_add_u32 s13, s13, {WS_QP:#x}")
        a("s_add_u32 s12, s13, 0x1000")
        a("s_waitcnt lgkmcnt(0)")
        a(f"s_add_u32 s{sTAG}, s{sTAG}, {TAGK:#x}")
        groups = [[(8 + 4 * k, 4, 4, "s13" if k < 4 else "s12", (k % 4) * 1024) for k in (2 * i, 2 * i + 1)] for i in range(4)]
        words = [[9 + 8 * i, 11 + 8 * i, 13 + 8 * i, 15 + 8 * i] for i in range(4)]
        self.poll(groups, 40, words=words, tail=False)
        for k in range(1, 8):
            a(f"v_add_f32 v8, v8, v{8+4*k}")
            a(f"v_add_f32 v10, v10, v{10+4*k}")
        a(f"v_lshlrev_b32 v4, 3, v{vLane}")
        a("s_lshl_b32 s13, s3, 14")
        a("s_lshl_b32 s12, s2, 9")
        a("s_add_u32 s13, s13, s12")
        a(f"s_add_u32 s13, s13, {WS_QG:#x}")
        a("v_cvt_pk_bf16_f32 v8, v8, v10")
        a(f"buffer_store_dwordx2 v[8:9], v4, {sr(RWS,4)}, s13 offen sc1")
        a(f"s_sub_u32 s{sTAG}, s{sTAG}, {TAGK:#x}")
        self.stamp(6)
        a.label("L_noqld")
        a(f"s_cmp_lg_u32 s{sROLE}, 3")
        a("s_cbranch_scc1 L_idx")
        a(f"s_sub_u32 s{sIDX}, s2, 64")
        a.label("L_idx")
        make_srd(a, ROUT, P_OUT, 2048)
        a(f"s_cmp_lg_u32 s3, {44 if self.noclean else 3}")
        a("s_cbranch_scc1 L_noclean")
        for r in range(4):
            a(f"v_mov_b32 v{8+r}, -1")
        self.ao_addr()
        a(f"v_lshrrev_b32 v4, 5, v{vLane}")
        a("v_lshlrev_b32 v4, 13, v4")
        a(f"v_and_b32 v7, 31, v{vLane}")
        a("v_lshl_add_u32 v4, v7, 4, v4")
        a(f"buffer_store_dwordx4 v[8:11], v4, {sr(RWS,4)}, s13 offen sc1")
        a("s_add_u32 s13, s13, 0x4000")
        a(f"buffer_store_dwordx4 v[8:11], v4, {sr(RWS,4)}, s13 offen sc1")
        a(f"v_and_b32 v4, 3, v{vLane}")
        a("v_lshlrev_b32 v4, 7, v4")
        a(f"buffer_store_dwordx2 v[8:9], v4, {sr(RWS,4)}, s12 offen sc1")
        a(f"s_cmp_eq_u32 s{sROLE}, 2")
        a("s_cbranch_scc0 L_cl_n2")
        self.c_addr(4, 11)
        a(f"s_lshl_b32 s13, s{sHKV}, 12")
        a(f"s_lshl_b32 s12, s{sIDX}, 9")
        a("s_add_u32 s13, s13, s12")
        a(f"s_add_u32 s13, s13, {WS_WP:#x}")
        a(f"buffer_store_dwordx4 v[8:11], v4, {sr(RWS,4)}, s13 offen sc1")
        a.label("L_cl_n2")
        a(f"s_cmp_eq_u32 s{sROLE}, 3")
        a("s_cbranch_scc0 L_cl_n3")
        a(f"v_lshlrev_b32 v4, 4, v{vLane}")
        a(f"s_lshl_b32 s13, s{sIDX}, 13")
        a(f"s_add_u32 s13, s13, {WS_DP:#x}")
        for k in range(8):
            a(f"buffer_store_dwordx4 v[8:11], v4, {sr(RWS,4)}, s13 offen offset:{(k%4)*1024} sc1")
            if k == 3: a("s_add_u32 s13, s13, 4096")
        a.label("L_cl_n3")
        a("s_cmp_ge_u32 s2, 16")
        a("s_cbranch_scc1 L_cl_n4")
        a("v_mov_b32 v4, 0")
        a("s_lshl_b32 s13, s2, 8")
        a(f"s_add_u32 s13, s13, {WS_POOL:#x}")
        a(f"buffer_store_dword v4, v4, {sr(RWS,4)}, s13 offen sc1")
        a.label("L_cl_n4")
        a("s_lshl_b32 s13, s2, 2")
        a(f"s_add_u32 s13, s13, {WS_FLAG:#x}")
        a("v_mov_b32 v4, 0")
        a("s_waitcnt vmcnt(0) lgkmcnt(0)")
        a(f"s_add_u32 s12, s{sTAG}, {TAGK:#x}")
        a("v_mov_b32 v8, s12")
        a("s_mov_b64 exec, 1")
        a(f"buffer_store_dword v8, v4, {sr(RWS,4)}, s13 offen sc1")
        a("s_mov_b64 exec, -1")
        a.label("L_noclean")
        if self.stamps:
            a("s_cmp_lt_u32 s3, 2")
            a("s_cbranch_scc1 L_nst6")
            self.stamp(6)
            a.label("L_nst6")
        a(f"s_cmp_lt_u32 s{sROLE}, 2")
        a("s_cbranch_scc1 L_ring")
        a(f"s_cmp_eq_u32 s{sROLE}, 3")
        a("s_cbranch_scc1 L_ffn_w")
        make_srd(a, RW1, P_WO, 4096 * 512 * 2)
        a(f"s_lshl_b32 s13, s{sHKV}, 19")
        a("s_lshl_b32 s12, s3, 16")
        a("s_add_u32 s13, s13, s12")
        a(f"s_lshl_b32 s12, s{sIDX}, 8")
        a("s_add_u32 s13, s13, s12")
        a("v_lshlrev_b32 v4, 14, v2")
        a("v_lshl_add_u32 v4, v3, 4, v4")
        for t in range(16):
            a(f"buffer_load_dwordx4 {vr(W+4*t,4)}, v4, {sr(RW1,4)}, s13 offen offset:{(t%4)*1024} nt")
            if t % 4 == 3: a("s_add_u32 s13, s13, 4096")
        a("s_branch L_sels")
        a.label("L_ffn_w")
        make_srd(a, RW1, P_WG, 512 * 1792 * 2)
        make_srd(a, RW2, P_WU, 512 * 1792 * 2)
        make_srd(a, RWD, P_WD, 1792 * 512 * 2)
        a("s_mul_i32 s13, s3, 64*3584")
        a(f"s_lshl_b32 s12, s{sIDX}, 7")
        a("s_add_u32 s13, s13, s12")
        a("s_mov_b32 s12, 16*3584")
        a("v_mul_lo_u32 v4, v2, s12")
        a("v_and_b32 v7, 7, v3")
        a("v_lshl_add_u32 v4, v7, 4, v4")
        a("s_mov_b32 s12, s13")
        a("s_not_b64 exec, s[6:7]")
        for t in range(16):
            a(f"buffer_load_dwordx4 {vr(W+4*t,4)}, v4, {sr(RW1,4)}, s13 offen nt")
            a("s_add_u32 s13, s13, 3584")
        a("s_mov_b64 exec, s[6:7]")
        for t in range(16):
            a(f"buffer_load_dwordx4 {vr(W+4*t,4)}, v4, {sr(RW2,4)}, s12 offen nt")
            a("s_add_u32 s12, s12, 3584")
        a("s_mov_b64 exec, -1")
        a(f"s_lshl_b32 s13, s{sIDX}, 16")
        a("s_lshr_b32 s12, s3, 2")
        a("s_lshl_b32 s12, s12, 15")
        a("s_add_u32 s13, s13, s12")
        a("s_and_b32 s12, s3, 3")
        a("s_lshl_b32 s12, s12, 8")
        a("s_add_u32 s13, s13, s12")
        a("v_lshlrev_b32 v4, 13, v2")
        a("v_lshl_add_u32 v4, v3, 4, v4")
        for t in range(8):
            a(f"buffer_load_dwordx4 {vr(WD+4*t,4)}, v4, {sr(RWD,4)}, s13 offen offset:{(t%4)*1024} nt")
            if t % 4 == 3: a("s_add_u32 s13, s13, 4096")
        a.label("L_sels")
        make_sels(a, SEL, 3, 48, 49, 15)
        a("s_barrier")
        a.label("L_ring")
        def draw(dst):
            l1 = a.newlabel("L_df"); l2 = a.newlabel("L_dd")
            a("s_mov_b64 exec, 1")
            a(f"ds_add_rtn_u32 v{vTk}, v{vTa}, v{vT1}")
            a("s_mov_b64 exec, -1")
            a("s_waitcnt lgkmcnt(0)")
            a(f"v_readfirstlane_b32 s{dst}, v{vTk}")
            a("s_nop 0")
            a(f"s_cmp_lt_u32 s{dst}, s{sT0}")
            a(f"s_cbranch_scc1 {l1}")
            self.slow(dst, l2, 0)

            a.label(l1)
            a(f"s_add_u32 s{dst}, s{dst}, s{sSLAB}")
            a(f"s_and_b32 s{dst}, s{dst}, 0x7fffff")
            a.label(l2)
            self.flush()
        a(f"s_mov_b32 s{sPD}, -1")
        a(f"s_mov_b32 s{sPD+1}, -1")
        a("s_and_b32 s25, s2, 15")
        a(f"s_mul_i32 s25, s25, {self.rot*4096:#x}")
        a("s_add_u32 s20, s20, s25")
        a(f"s_add_u32 s25, s25, {(2048-self.pool)*4096:#x}")
        a(f"s_mov_b32 s{sSLAB}, s20")
        a(f"s_mov_b32 s{sSB}, s21")
        a(f"s_sub_u32 s{sT0}, s21, {self.look*4096}")
        for e in range(3):
            a(f"s_mov_b32 s{sE+e}, -1")
        a(f"s_mov_b32 s{sE+3}, 0")
        a("s_waitcnt lgkmcnt(0)")
        a(f"s_add_u32 s{sTAG}, s{sTAG}, {TAGK:#x}")
        if not self.nopoll:
            a("s_cmp_eq_u32 s3, 2")
            a("s_cbranch_scc1 L_qg")
        a("s_setprio 0")
        a.label("L_ring2")
        a("s_and_b32 s12, s2, 15")
        a("s_lshl_b32 s12, s12, 2")
        a(f"s_add_u32 s12, s12, {WS_FLAG:#x}")
        a("v_mov_b32 v4, 0")
        a(f"v_mov_b32 v{vPF}, 0")
        for d in range(2):
            draw(sOF0 + d)
            self.ldK(d); self.ldV(d)
            self.proghook()
        a(f"s_cmp_ge_u32 s{sROLE}, 2")
        a("s_cbranch_scc1 L_waitq")
        for e in range(self.ne):
            a(f"ds_read_b32 v8, v{vTa} offset:4")
            a("s_waitcnt lgkmcnt(0)")
            a("v_readfirstlane_b32 s12, v8")
            a("s_cmp_lg_u32 s12, 0")
            a("s_cbranch_scc1 L_haveq")
            draw(sE + e)
            a(f"s_mov_b32 s{sE+3}, 1")
            self.ldK(2 + e); self.ldV(2 + e)
            self.proghook()
        a.label("L_waitq")
        a(f"ds_read_b32 v8, v{vTa} offset:4")
        a("s_waitcnt lgkmcnt(0)")
        a("v_readfirstlane_b32 s12, v8")
        a("s_cmp_lg_u32 s12, 0")
        a("s_cbranch_scc1 L_haveq")
        a(f"s_sub_u32 s{sTO}, s{sTO}, 1")
        a("s_cbranch_scc1 L_exit")
        a("s_sleep 2")
        a("s_branch L_waitq")
        a.label("L_qg")
        a(f"v_lshlrev_b32 v4, 4, v{vLane}")
        a(f"s_lshl_b32 s13, s{sB}, 14")
        a(f"s_lshl_b32 s12, s{sHKV}, 11")
        a("s_add_u32 s13, s13, s12")
        a(f"s_add_u32 s13, s13, {WS_QG:#x}")
        self.poll([[(8, 4, 4, "s13", 0), (12, 4, 4, "s13", 1024)]], 16, words=[[9, 11, 13, 15]], tail=False)
        a("v_mov_b32 v9, v10")
        a("v_mov_b32 v13, v14")
        a(f"v_lshlrev_b32 v4, 3, v{vLane}")
        a(f"ds_write_b64 v4, v[8:9] offset:{LQ}")
        a(f"ds_write_b64 v4, v[12:13] offset:{LQ+512}")
        a("v_mov_b32 v8, 1")
        a("s_waitcnt lgkmcnt(0)")
        a(f"ds_write_b32 v{vTa}, v8 offset:4")
        a("s_setprio 0")
        a("s_branch L_ring2")
        a.label("L_haveq")
        if self.qbar: a("s_barrier")
        self.stamp(1)
        a("v_lshrrev_b32 v4, 2, v3")
        a("v_lshlrev_b32 v4, 8, v4")
        a("v_lshl_add_u32 v4, v2, 4, v4")
        for j in range(4):
            a(f"ds_read_b128 {vr(Q+4*j,4)}, v4 offset:{LQ+j*64}")
        a(f"v_lshlrev_b32 v4, 4, v{vLane}")
        a(f"s_mov_b32 s13, {WS_FLAG:#x}")
        a(f"s_cmp_eq_u32 s{sROLE}, 0")
        a("s_cbranch_scc1 L_nofl")
        a(f"buffer_load_dwordx4 {vr(FL,4)}, v4, {sr(RWS,4)}, s13 offen sc1")
        a.label("L_nofl")
        a("s_and_b32 s12, s2, 15")
        a("s_lshl_b32 s12, s12, 2")
        a(f"s_add_u32 s12, s12, {WS_FLAG:#x}")
        a("v_mov_b32 v4, 0")
        a(f"buffer_load_dword v{vPF}, v4, {sr(RWS,4)}, s12 offen sc1")
        for r in (0, 1, 4, 5, 8, 9, 12, 13, 16, 17):
            a(f"v_mov_b32 v{AW+r}, 0")
        for r in range(8):
            a(f"v_mov_b32 v{O0+r}, 0")
        a(f"v_mov_b32 v{vC}, 0xf149f2ca")
        a(f"v_mov_b32 v{vL}, 0")
        a(f"v_and_b32 v{vT}, 1, v3")
        a(f"v_lshlrev_b32 v{vT}, 4, v{vT}")
        a(f"v_mov_b32 v{vU}, 0xffff")
        a(f"v_lshlrev_b32 v{vU}, v{vT}, v{vU}")
        a(f"v_and_b32 v{vT}, 2, v3")
        a(f"v_cmp_eq_u32 vcc, 0, v{vT}")
        a("s_nop 1")
        a(f"v_cndmask_b32 v{vM0}, 0, v{vU}, vcc")
        a(f"v_cndmask_b32 v{vM1}, v{vU}, 0, vcc")
        a("s_waitcnt lgkmcnt(0)")
        a.raw(".p2align 3")
        a.label("L_loop")
        self.unit(0)
        self.unit(1)
        a(f"s_cmp_eq_u32 s{sE+3}, 0")
        a("s_cbranch_scc1 L_loop")
        a(f"s_mov_b32 s{sE+3}, 0")
        a(f"s_waitcnt vmcnt({8*D})")
        for e in range(self.ne):
            self.unit(2 + e)
        a("s_branch L_loop")
        for d in range(2):
            a.label(f"L_slow{d}")
            self.slow(sOF0 + d, f"L_back{d}", d)
            a.label(f"L_dlv{d}")
            self.deliver(d)
            a(f"s_branch L_dlb{d}")
        a.label("L_epi")
        a.raw(";TAIL_BEGIN")
        self.stamp(2)
        self.flush()
        xhalf32(a, vL, vU)
        xrow16(a, vL, vU)
        a("s_lshl_b32 s13, s3, 11")
        a("v_lshlrev_b32 v4, 9, v2")
        a("v_lshl_add_u32 v4, v3, 5, v4")
        a("v_add_u32 v4, s13, v4")
        a(f"ds_write_b128 v4, {vr(O0,4)} offset:{LO}")
        a(f"ds_write_b128 v4, {vr(O1,4)} offset:{LO+16}")
        a("v_lshrrev_b32 v4, 2, v3")
        a("v_lshlrev_b32 v4, 5, v4")
        a("s_lshl_b32 s13, s3, 2")
        a("v_add_u32 v4, s13, v4")
        a(f"ds_write_b32 v4, v{vC} offset:{LC}")
        a(f"ds_write_b32 v4, v{vL} offset:{LL}")
        self.ao_addr()
        a("s_waitcnt lgkmcnt(0)")
        self.barrier()
        self.stamp(4)
        self.only_waves_below(2, "L_role")
        CW = 8; LW = 16; OW = 24; OA = 56
        a("v_bfe_u32 v7, v0, 5, 2")
        a("v_lshlrev_b32 v4, 5, v7")
        for w in range(0, NW, 4):
            a(f"ds_read_b128 {vr(CW+w,4)}, v4 offset:{LC+4*w}")
            a(f"ds_read_b128 {vr(LW+w,4)}, v4 offset:{LL+4*w}")
        a("v_and_b32 v4, 127, v0")
        a("v_lshlrev_b32 v4, 4, v4")
        for w in range(NW):
            a(f"ds_read_b128 {vr(OW+4*w,4)}, v4 offset:{LO+2048*w}")
        a(f"s_waitcnt lgkmcnt({NW})")
        a(f"v_max_f32 v{vC}, v{CW}, v{CW+1}")
        for w in range(2, NW, 2):
            a(f"v_max3_f32 v{vC}, v{vC}, v{CW+w}, v{CW+w+1}")
        for w in range(NW):
            a(f"v_sub_f32 v{CW+w}, v{CW+w}, v{vC}")
        for w in range(NW):
            a(f"v_exp_f32 v{CW+w}, v{CW+w}")
        a("v_lshlrev_b32 v4, 13, v7")
        a(f"v_mul_f32 v{vL}, v{CW}, v{LW}")
        for w in range(1, NW):
            a(f"v_fmac_f32 v{vL}, v{CW+w}, v{LW+w}")
        a("v_and_b32 v62, 31, v0")
        a("v_lshl_add_u32 v4, v62, 4, v4")
        for w in range(NW):
            a(f"s_waitcnt lgkmcnt({NW-1-w})")
            for r in range(4):
                if w == 0: a(f"v_mul_f32 v{OA+r}, v{CW}, v{OW+r}")
                else: a(f"v_fmac_f32 v{OA+r}, v{CW+w}, v{OW+4*w+r}")
        for r in range(4):
            a(f"v_min_u32 v{OA+r}, -2, v{OA+r}")
        a(f"v_min_u32 v{vC}, -2, v{vC}")
        a(f"v_min_u32 v{vL}, -2, v{vL}")
        self.store(OA, 4, 4, "s13")
        a("v_lshlrev_b32 v4, 7, v7")
        self.store(vC, 2, 4, "s12")
        a.label("L_role")
        self.stamp(3)
        a(f"s_cmp_eq_u32 s{sROLE}, 0")
        a("s_cbranch_scc1 L_done")
        a("s_waitcnt vmcnt(0)") if not self.dry else None
        if self.dry:
            l = a.newlabel("L_nw"); self.skip_if_dry(l); a("s_waitcnt vmcnt(0)"); a.label(l)
        self.check_flags()
        a(f"s_cmp_eq_u32 s{sROLE}, 3")
        a("s_cbranch_scc1 L_ffn")
        a(f"s_cmp_eq_u32 s{sROLE}, 1")
        a("s_cbranch_scc1 L_fin")
        P = RING; ML = RING + 32; A = 32; Y = 16
        a("s_lshr_b32 s12, s3, 2")
        a("s_lshl_b32 s12, s12, 5")
        a(f"s_lshl_b32 s13, s{sHKV}, 2")
        a("s_add_u32 s12, s12, s13")
        a("s_and_b32 s13, s3, 3")
        a("s_add_u32 s12, s12, s13")
        a("s_lshl_b32 vcc_hi, s12, 7")
        a(f"s_add_u32 s{sJ}, vcc_hi, {WS_AM:#x}")
        a("s_lshl_b32 s13, s12, 13")
        a(f"s_add_u32 s13, s13, {WS_AO:#x}")
        a("v_lshl_add_u32 v4, v2, 2, v3")
        a("v_and_b32 v4, 15, v4")
        a("v_lshlrev_b32 v4, 3, v4")
        a("v_lshlrev_b32 v7, 11, v2")
        a("v_lshl_add_u32 v7, v3, 4, v7")
        self.barrier()
        self.prepoll(ML, 2, 4, f"s{sJ}", 8, 16)
        groups = [[(P + 8 * i, 4, 7, "s13", 512 * i), (P + 8 * i + 4, 4, 7, "s13", 512 * i + 256)] for i in range(4)]
        groups.append([(ML, 2, 4, f"s{sJ}", 0)])
        self.poll(groups, 8)
        self.stamp(4)
        a(f"v_mov_b32 v50, v{ML}")
        reduce_row16_add(a, 50, "max")
        a(f"v_sub_f32 v50, v{ML}, v50")
        a("v_exp_f32 v50, v50")
        a("s_nop 0")
        a(f"v_mul_f32 v51, v50, v{ML+1}")
        reduce_row16_add(a, 51)
        a("v_rcp_f32 v52, v51")
        a("s_nop 0")
        a("v_fma_f32 v53, -v51, v52, 1.0")
        a("v_fmac_f32 v52, v53, v52")
        a("v_mul_f32 v50, v50, v52")
        a("v_lshrrev_b32 v4, 1, v2")
        a("v_lshlrev_b32 v4, 7, v4")
        for r in range(8):
            a(f"v_mul_f32_dpp v{A+r}, v50, v{P+r} row_newbcast:0 row_mask:0xf bank_mask:0xf")
        for i in range(1, 4):
            for r in range(8):
                a(f"v_fmac_f32_dpp v{A+r}, v50, v{P+8*i+r} row_newbcast:{i} row_mask:0xf bank_mask:0xf")
        a("v_lshl_add_u32 v4, v3, 3, v4")
        a("v_and_b32 v7, 1, v2")
        for r in range(4):
            a(f"v_permlane32_swap_b32 v{A+r}, v{A+4+r}")
        for r in range(4):
            a(f"v_add_f32 v{A+r}, v{A+r}, v{A+4+r}")
        a("v_lshl_add_u32 v4, v7, 2, v4")
        a("s_lshl_b32 s13, s3, 8")
        for r in range(2):
            a(f"v_permlane16_swap_b32 v{A+r}, v{A+2+r}")
        for r in range(2):
            a(f"v_add_f32 v{A+r}, v{A+r}, v{A+2+r}")
        a("v_add_u32 v4, s13, v4")
        a(f"v_cvt_pk_bf16_f32 v{A}, v{A}, v{A+1}")
        a(f"ds_write_b32 v4, v{A} offset:{LX}")
        a("v_lshrrev_b32 v4, 3, v3")
        a("v_lshlrev_b32 v4, 10, v4")
        a("v_lshl_add_u32 v4, v2, 5, v4")
        a("s_lshl_b32 s13, s3, 7")
        a("v_add_u32 v4, s13, v4")
        a("s_waitcnt lgkmcnt(0)")
        self.barrier()
        a(f"ds_read_b128 {vr(Y,4)}, v4 offset:{LX}")
        a(f"ds_read_b128 {vr(Y+4,4)}, v4 offset:{LX+16}")
        a("s_waitcnt lgkmcnt(0)")
        gemv_mfma(a, Y, 16, W, SEL, 52, 56, 60)
        self.xwave_reduce(60, 8, "L_done")
        for r in range(4):
            a(f"v_min_u32 v{8+r}, -2, v{8+r}")
        self.c_addr(4, 11)
        a(f"s_lshl_b32 s13, s{sHKV}, 12")
        a(f"s_lshl_b32 s12, s{sIDX}, 9")
        a("s_add_u32 s13, s13, s12")
        a(f"s_add_u32 s13, s13, {WS_WP:#x}")
        self.store(8, 4, 4, "s13")
        a("s_branch L_done")
        a.label("L_ffn")
        P = RING; X = 8; Y = 16; F = 32
        a("v_lshlrev_b32 v4, 3, v0")
        a("v_lshlrev_b32 v7, 2, v0")
        l = a.newlabel("L_nx")
        self.skip_if_dry(l)
        a(f"buffer_load_dword v{P+16}, v7, {sr(RX,4)}, 0 offen ;POLL")
        a.label(l)
        a(f"s_mov_b32 s13, {WS_WP:#x}")
        a(f"s_mov_b32 s{sJ}, {WS_WP+0x4000:#x}")
        self.barrier()
        a(f"s_and_b32 s12, s{sIDX}, 7")
        a("s_lshl_b32 s12, s12, 12")
        a("v_mov_b32 v8, s12")
        self.prepoll(P, 1, 8, "s13", 9, 0)
        a("v_add_u32 v69, 0x1000, v4")
        a("v_add_u32 v70, 0x2000, v4")
        a("v_add_u32 v71, 0x3000, v4")
        av = [4, 69, 70, 71]
        groups = [[(P + 2 * k, 2, av[k % 4], "s13" if k < 4 else f"s{sJ}", 0) for k in (2 * i, 2 * i + 1)] for i in range(4)]
        self.poll(groups, 8)
        self.stamp(4)
        a(f"v_add_f32 v8, v{P}, v{P+2}")
        a(f"v_add_f32 v9, v{P+1}, v{P+3}")
        for k in range(2, 8):
            a(f"v_add_f32 v8, v8, v{P+2*k}")
            a(f"v_add_f32 v9, v9, v{P+2*k+1}")
        a("v_cvt_pk_bf16_f32 v8, 0, v8")
        a("v_cvt_pk_bf16_f32 v9, 0, v9")
        a(f"v_lshlrev_b32 v10, 16, v{P+16}")
        a(f"v_and_b32 v11, 0xffff0000, v{P+16}")
        a("v_add_f32 v8, v8, v10")
        a("v_add_f32 v9, v9, v11")
        a("v_cvt_pk_bf16_f32 v8, v8, v9")
        a(f"ds_write_b32 v7, v8 offset:{LX}")
        a(f"v_lshlrev_b32 v7, 5, v{vLane}")
        a("v_lshrrev_b32 v4, 3, v3")
        a("v_lshlrev_b32 v4, 10, v4")
        a("v_lshl_add_u32 v4, v2, 5, v4")
        a("s_lshl_b32 s13, s3, 7")
        a("v_add_u32 v4, s13, v4")
        a("s_waitcnt lgkmcnt(0)")
        self.barrier()
        a(f"ds_read_b128 {vr(X,4)}, v7 offset:{LX}")
        a(f"ds_read_b128 {vr(X+4,4)}, v7 offset:{LX+16}")
        a(f"ds_read_b128 {vr(Y,4)}, v4 offset:{LX}")
        a(f"ds_read_b128 {vr(Y+4,4)}, v4 offset:{LX+16}")
        a("s_waitcnt lgkmcnt(2)")
        ln_stats(a, X, F, 50, 51, 48, 49, 6)
        a("s_waitcnt lgkmcnt(0)")
        ln_apply(a, Y, 8, 50, 51, 48, 49)
        gemv_mfma(a, Y, 16, W, SEL, 52, 56, 60)
        a("v_lshlrev_b32 v4, 4, v0")
        a("s_nop 7")
        a(f"ds_write_b128 v4, {vr(60,4)} offset:{LR}")
        a("v_bfe_u32 v4, v0, 6, 1")
        a("v_lshlrev_b32 v4, 9, v4")
        a(f"v_bfe_u32 v7, v{vLane}, 2, 1")
        a("v_lshl_add_u32 v4, v7, 8, v4")
        a(f"v_lshrrev_b32 v7, 3, v{vLane}")
        a("v_lshl_add_u32 v4, v7, 4, v4")
        a(f"v_and_b32 v7, 3, v{vLane}")
        a("v_lshl_add_u32 v4, v7, 2, v4")
        a("s_waitcnt lgkmcnt(0)")
        self.barrier()
        self.only_waves_below(2, "L_noact")
        G = 8
        for w in range(8):
            a(f"ds_read_b32 v{G+w}, v4 offset:{LR+1024*w}")
            a(f"ds_read_b32 v{G+8+w}, v4 offset:{LR+1024*w+128}")
        a("v_and_b32 v4, 127, v0")
        a("v_lshlrev_b32 v4, 1, v4")
        a("s_waitcnt lgkmcnt(0)")
        for w in range(1, 8):
            a(f"v_add_f32 v{G}, v{G}, v{G+w}")
            a(f"v_add_f32 v{G+8}, v{G+8}, v{G+8+w}")
        a(f"v_cvt_pk_bf16_f32 v{G}, 0, v{G}")
        a(f"v_cvt_pk_bf16_f32 v{G+8}, 0, v{G+8}")
        a(f"v_mul_f32 v{G+1}, 0xbfb8aa3b, v{G}")
        a(f"v_exp_f32 v{G+1}, v{G+1}")
        a("s_nop 0")
        a(f"v_add_f32 v{G+1}, 1.0, v{G+1}")
        a(f"v_rcp_f32 v{G+2}, v{G+1}")
        a("s_nop 0")
        a(f"v_mul_f32 v{G+3}, v{G}, v{G+2}")
        a(f"v_fma_f32 v{G+4}, -v{G+3}, v{G+1}, v{G}")
        a(f"v_fmac_f32 v{G+3}, v{G+4}, v{G+2}")
        a(f"v_cvt_pk_bf16_f32 v{G+3}, 0, v{G+3}")
        a(f"v_mul_f32 v{G+3}, v{G+3}, v{G+8}")
        a(f"v_cvt_pk_bf16_f32 v{G+3}, v{G+3}, v{G+3}")
        a(f"ds_write_b16 v4, v{G+3} offset:{LA}")
        a("s_waitcnt lgkmcnt(0)")
        a.label("L_noact")
        a("v_lshrrev_b32 v4, 3, v3")
        a("v_lshlrev_b32 v4, 7, v4")
        a("v_lshl_add_u32 v4, v2, 4, v4")
        a("s_lshr_b32 s12, s3, 2")
        a("s_lshl_b32 s13, s12, 6")
        a("v_add_u32 v4, s13, v4")
        self.barrier()
        a(f"ds_read_b128 {vr(Y,4)}, v4 offset:{LA}")
        self.c_addr(4, 11)
        a(f"s_lshl_b32 s13, s{sIDX}, 13")
        a("s_lshl_b32 s12, s12, 12")
        a("s_add_u32 s13, s13, s12")
        a("s_and_b32 s12, s3, 3")
        a("s_lshl_b32 s12, s12, 9")
        a("s_add_u32 s13, s13, s12")
        a(f"s_add_u32 s13, s13, {WS_DP:#x}")
        a("s_waitcnt lgkmcnt(0)")
        gemv_mfma(a, Y, 8, WD, SEL, 52, 56, 60)
        a("s_nop 7")
        for r in range(4):
            a(f"v_min_u32 v{60+r}, -2, v{60+r}")
        self.store(60, 4, 4, "s13")
        a("s_branch L_done")
        a.label("L_fin")
        self.only_waves_below(1, "L_done")
        P = RING; H = 8
        a(f"v_and_b32 v7, 7, v{vLane}")
        a("v_lshlrev_b32 v4, 4, v7")
        a("v_add_u32 v69, 0x1000, v4")
        a("v_add_u32 v70, 0x2000, v4")
        a("v_add_u32 v71, 0x3000, v4")
        a("v_lshlrev_b32 v7, 3, v7")
        a("s_lshl_b32 s12, s2, 6")
        l = a.newlabel("L_nx")
        self.skip_if_dry(l)
        a(f"buffer_load_dwordx2 {vr(P+60,2)}, v7, {sr(RX,4)}, s12 offen ;POLL")
        a.label(l)
        a("s_lshl_b32 s12, s2, 7")
        a(f"s_add_u32 s13, s12, {WS_WP:#x}")
        a(f"s_add_u32 s{sJ}, s12, {WS_WP+0x4000:#x}")
        groups = [[(P + 4 * k, 4, av[k % 4], "s13" if k < 4 else f"s{sJ}", 0) for k in (2 * i, 2 * i + 1)] for i in range(4)]
        self.poll(groups, 8, gate="sleep")
        for r in range(4):
            a(f"v_add_f32 v{H+r}, v{P+r}, v{P+4+r}")
        for k in range(2, 8):
            for r in range(4):
                a(f"v_add_f32 v{H+r}, v{H+r}, v{P+4*k+r}")
        for r in range(4):
            a(f"v_cvt_pk_bf16_f32 v{H+r}, 0, v{H+r}")
        a(f"v_lshlrev_b32 v12, 16, v{P+60}")
        a(f"v_and_b32 v13, 0xffff0000, v{P+60}")
        a(f"v_lshlrev_b32 v14, 16, v{P+61}")
        a(f"v_and_b32 v15, 0xffff0000, v{P+61}")
        for r in range(4):
            a(f"v_add_f32 v{H+r}, v{H+r}, v{12+r}")
        for r in range(4):
            a(f"v_cvt_pk_bf16_f32 v{H+r}, 0, v{H+r}")
        a(f"v_lshrrev_b32 v16, 3, v{vLane}")
        a("v_lshl_add_u32 v4, v16, 12, v4")
        for k in range(1, 4):
            a(f"v_add_u32 v{68+k}, {0x8000*k:#x}, v4")
        a("s_lshl_b32 s12, s2, 7")
        a(f"s_add_u32 s13, s12, {WS_DP:#x}")
        a(f"s_add_u32 s{sJ}, s13, 0x20000")
        groups = [[(P + 4 * k, 4, av[k % 4], "s13" if k < 4 else f"s{sJ}", 0) for k in range(2 * i, min(2 * i + 2, 7))] for i in range(4)]
        self.poll(groups, 16)
        self.stamp(4)
        T = 12
        for r in range(4):
            a(f"v_add_f32 v{T+r}, v{P+r}, v{P+4+r}")
        for k in range(2, 7):
            for r in range(4):
                a(f"v_add_f32 v{T+r}, v{T+r}, v{P+4*k+r}")
        a("s_nop 1")
        for r in range(4):
            a(f"v_add_f32_dpp v{T+r}, v{T+r}, v{T+r} row_ror:8 row_mask:0xf bank_mask:0xf")
        for r in range(4):
            a(f"v_mov_b32 v{T+4+r}, v{T+r}")
        a("s_nop 0")
        for r in range(4):
            a(f"v_permlane16_swap_b32 v{T+r}, v{T+4+r}")
        for r in range(4):
            a(f"v_add_f32 v{T+r}, v{T+r}, v{T+4+r}")
        for r in range(4):
            a(f"v_mov_b32 v{T+4+r}, v{T+r}")
        a("s_nop 0")
        for r in range(4):
            a(f"v_permlane32_swap_b32 v{T+r}, v{T+4+r}")
        for r in range(4):
            a(f"v_add_f32 v{T+r}, v{T+r}, v{T+4+r}")
        for r in range(4):
            a(f"v_cvt_pk_bf16_f32 v{T+r}, 0, v{T+r}")
        for r in range(4):
            a(f"v_add_f32 v{H+r}, v{H+r}, v{T+r}")
        if self.pert:
            import struct
            el, dv = self.pert.split(":")
            bits = struct.unpack("<I", struct.pack("<f", float(dv)))[0]
            a("s_cmp_lg_u32 s2, 0")
            a("s_cbranch_scc1 L_nopert")
            a("s_mov_b64 exec, 1")
            a(f"v_add_f32 v{H+int(el)}, {bits:#x}, v{H+int(el)}")
            a("s_mov_b64 exec, -1")
            a.label("L_nopert")
        a(f"v_cvt_pk_bf16_f32 v{H}, v{H}, v{H+1}")
        a(f"v_cvt_pk_bf16_f32 v{H+1}, v{H+2}, v{H+3}")
        a("s_lshl_b32 s12, s2, 6")
        a("s_mov_b64 exec, 0xff")
        self.store(H, 2, 7, "s12", srd=ROUT, flags="")
        a("s_cmp_lg_u32 s2, 0")
        a("s_cbranch_scc1 L_noep")
        a(f"v_mov_b32 v8, s{sTAG}")
        a("v_mov_b32 v4, 0")
        a("s_mov_b64 exec, 1")
        self.store(8, 1, 4, "0", imm=WS_EPOCH, flags="")
        a.label("L_noep")
        a("s_mov_b64 exec, -1")
        a.label("L_done")
        a.raw(";TAIL_END")
        if self.dry:
            a(f"s_cmp_eq_u32 s{sDRY}, 1")
            a("s_cbranch_scc1 L_dryend")
        if self.stamps:
            self.stamp(5)
            a("s_getreg_b32 s12, hwreg(HW_REG_XCC_ID)")
            a("s_waitcnt lgkmcnt(0)")
            a(f"v_mov_b32 v8, s{sST+12}")
            a(f"v_mov_b32 v9, s{sST+2}")
            a(f"v_mov_b32 v10, s{sST+4}")
            a(f"v_mov_b32 v11, s{sST+8}")
            a("v_mov_b32 v4, 0")
            a("s_lshl_b32 s13, s2, 3")
            a("s_add_u32 s13, s13, s3")
            a("s_lshl_b32 s13, s13, 4")
            a(f"s_add_u32 s13, s13, {STAMP+0x8000:#x}")
            a("s_mov_b64 exec, 1")
            a(f"buffer_store_dwordx4 v[8:11], v4, {sr(RWS,4)}, s13 offen")
            a("s_mov_b64 exec, -1")
            a("s_cmp_lg_u32 s3, 1")
            a("s_cbranch_scc1 L_st0")
            a(f"v_mov_b32 v8, s{sST+12}")
            a(f"v_mov_b32 v9, s{sST+4}")
            a("v_mov_b32 v4, 0")
            a("s_lshl_b32 s13, s2, 3")
            a(f"s_add_u32 s13, s13, {STAMP+0x4000:#x}")
            a("s_mov_b64 exec, 1")
            a(f"buffer_store_dwordx2 v[8:9], v4, {sr(RWS,4)}, s13 offen")
            a.label("L_st0")
            a("s_cmp_lg_u32 s3, 0")
            a("s_cbranch_scc1 L_exit")
            for k in range(6):
                a(f"v_mov_b32 v{8+k}, s{sST+2*k}")
            a("v_mov_b32 v14, s12")
            a(f"v_mov_b32 v15, s{sROLE}")
            a("v_mov_b32 v4, 0")
            a("s_lshl_b32 s13, s2, 5")
            a(f"s_add_u32 s13, s13, {STAMP:#x}")
            a("s_mov_b64 exec, 1")
            a(f"buffer_store_dwordx4 v[8:11], v4, {sr(RWS,4)}, s13 offen")
            a(f"buffer_store_dwordx4 v[12:15], v4, {sr(RWS,4)}, s13 offen offset:16")
        if self.dbgst:
            make_srd(a, RW1, P_DBG, 256)
            a("s_mov_b64 exec, 1")
            for wg, base, ks in ((0, 0, (0, 1, 2, 3, 4, 5)), (40, 6, (3, 4, 5)), (70, 9, (3, 4, 5)), (200, 12, (0, 1, 2, 3))):
                l = a.newlabel("L_dg")
                a(f"s_cmp_lg_u32 s2, {wg}")
                a(f"s_cbranch_scc1 {l}")
                for i, k in enumerate(ks):
                    a(f"v_mov_b32 v8, s{sST+2*k}")
                    a(f"v_mov_b32 v4, {4*(base+i)}")
                    a(f"buffer_store_dword v8, v4, {sr(RW1,4)}, 0 offen")
                    a("s_nop 1")
                a.label(l)
        a.label("L_exit")
        a("s_endpgm")
        self.check_tail()
        out = HEADER + f"; @launch grid=(256,1,1) block=(512,1,1) lds={LDS_BYTES}\n"
        out += '.amdgcn_target "amdgcn-amd-amdhsa--gfx950"\n.text\n' + a.text()
        out += '.section .rodata,"a"\n' + kernel_desc(name, NVGPR)
        return out

    def check_tail(self):
        on = False
        for ln in self.a.lines:
            if ln.startswith(";TAIL_BEGIN"): on = True; continue
            if ln.startswith(";TAIL_END"): on = False; continue
            if not on or ";POLL" in ln: continue
            s = ln.strip()
            m = re.match(r"(v_\w+|ds_read\w+|buffer_load\w+)\s+(v\[(\d+):(\d+)\]|v(\d+))", s)
            if not m or s.startswith("v_cmp"): continue
            regs = [int(m.group(5))] if m.group(5) else list(range(int(m.group(3)), int(m.group(4)) + 1))
            if "swap" in s:
                regs.append(int(re.findall(r"v(\d+)", s.split(",")[1])[0]))
            for r in regs:
                assert r in (4, 7) or 8 <= r <= 71, f"tail writes v{r}: {s}"

if __name__ == "__main__":
    import argparse
    ap = argparse.ArgumentParser()
    ap.add_argument("-o", default="fused.s")
    ap.add_argument("--stamps", action="store_true")
    ap.add_argument("--nodry", action="store_true")
    ap.add_argument("--pace", action="store_true")
    ap.add_argument("--qfirst", type=int, default=2)
    ap.add_argument("--ne", type=int, default=3)
    ap.add_argument("--pd", type=int, default=1)
    ap.add_argument("--notail", action="store_true")
    ap.add_argument("--noq", action="store_true")
    ap.add_argument("--qbar", action="store_true")
    ap.add_argument("--prog", action="store_true")
    ap.add_argument("--nopoll", action="store_true")
    ap.add_argument("--noprod", action="store_true")
    ap.add_argument("--noclean", action="store_true")
    ap.add_argument("--qsleep", type=int, default=0)
    ap.add_argument("--pool", type=int, default=256)
    ap.add_argument("--look", type=int, default=8)
    ap.add_argument("--chunk", type=int, default=4)
    ap.add_argument("--notr", action="store_true")
    ap.add_argument("--rot", type=int, default=0)
    ap.add_argument("--pert", default=None)
    ap.add_argument("--dbgst", action="store_true")
    ap.add_argument("--dwo", type=int, default=16)
    ap.add_argument("--dffn", type=int, default=24)
    x = ap.parse_args()
    open(x.o, "w").write(Gen(stamps=x.stamps, dry=False, pace=x.pace, qfirst=x.qfirst, ne=x.ne, pd=x.pd, notail=x.notail, noq=x.noq, qbar=x.qbar, prog=x.prog, nopoll=x.nopoll, noprod=x.noprod, noclean=x.noclean, qsleep=x.qsleep, pool=x.pool, look=x.look, chunk=x.chunk, rot=x.rot, pert=x.pert, dbgst=x.dbgst, transpose=not x.notr, dwo=x.dwo, dffn=x.dffn).gen())
```

```python
import sys, re
from gen_common import *

WS_EPOCH = 0x0
WS_FLAG = 0x1000
WS_QP = 0x100000
WS_POOL = 0x18000
WS_QG = 0x2000
WS_AM = 0xA000
WS_WP = 0xC000
WS_DP = 0x20000
WS_AO = 0x80000
WS_END = 0x180000
STAMP = 0x200000
TAGK = 0x9E3779B9

sWG, sWV, sL2E, sSC, sMK = 2, 3, 4, 5, 6
sHKV, sB, sS, sJ = 8, 9, 10, 11
sOF0, sOF1 = 14, 15
RK, RV, RW1, RWS, RW2, RWD, RX, ROUT = 40, 44, 48, 52, 56, 60, 64, 68
sTAG, sROLE, sDRY, sTO, sIDX = 72, 73, 74, 75, 76
sM = 78
sST = 88
sE = 16
vLane, vG, vI = 1, 2, 3
vKo, vVo = 5, 6
Q = 8; O0, O1 = 24, 28; AW = 32; S = 52; R = 56
vC, vL, vAa, vAo, vT, vU, vM0, vM1, vCn = 60, 61, 62, 63, 64, 65, 66, 67, 68
vTk, vTa, vT1 = 69, 70, 71
RING = 72
W = 136; WD = 200; SEL = 232; FL = 240
NVGPR = 248
D = 2
NW = 8
LQ = 0
LO = 1024; LC = LO + NW * 2048; LL = LC + 128
LX = 1024
LR = 3072
LA = 11264
LCNT = LL + 128
LQF = LCNT + 4
LCH = LCNT + 16
LDS_BYTES = LCH + 1024
EMPTY = 0xFFFFFFFE
INVALID = 0x40000000
sSLAB, sT0, sSB = 22, 23, 24
vPF = 244
vRQ = 245
sPD = 30


class Gen:
    def __init__(self, stamps=False, dry=True, pol="nt", pace=False, dwo=16, dffn=24, qfirst=2, ne=3, pd=1, notail=False, noq=False, qbar=False, prog=False, nopoll=False, noprod=False, noclean=False, qsleep=0, pool=256, look=8, transpose=True, chunk=4, rot=0, pert=None, dbgst=False, park=4, olddraw=0, lazye=False, sprio=0, noe_old=False, frag=4, p2=True, pslp=4, newln=True, quiet=False):
        self.a = Asm(); self.stamps = stamps; self.dry = dry; self.pol = pol; self.pace = pace
        self.dwo = dwo; self.dffn = dffn; self.qfirst = qfirst; self.ne = ne; self.pd = pd; self.notail = notail; self.noq = noq; self.qbar = qbar; self.prog = prog; self.nopoll = nopoll; self.noprod = noprod; self.noclean = noclean; self.qsleep = qsleep; self.pool = pool; self.look = look; self.transpose = transpose; self.chunk = chunk; self.rot = rot; self.pert = pert; self.dbgst = dbgst; self.park = park; self.olddraw = olddraw; self.lazye = lazye; self.sprio = sprio; self.noe_old = noe_old; self.frag = frag; self.p2 = p2; self.pslp = pslp; self.newln = newln; self.quiet = quiet; self.cshift = 12 + chunk.bit_length() - 1
        self.nst = 0

    def stamp(self, k):
        if self.stamps:
            self.a(f"s_memrealtime s[{sST+2*k}:{sST+2*k+1}]")

    def skip_if_dry(self, lab):
        if self.dry:
            self.a(f"s_cmp_eq_u32 s{sDRY}, 1")
            self.a(f"s_cbranch_scc1 {lab}")

    def barrier(self):
        a = self.a
        if self.dry:
            l = a.newlabel("L_nb")
            self.skip_if_dry(l)
            a("s_barrier")
            a.label(l)
        else:
            a("s_barrier")

    def only_waves_below(self, n, lab):
        a = self.a
        if self.dry:
            a(f"s_cmp_ge_u32 s{sIDX+1}, {n}")
        else:
            a(f"s_cmp_ge_u32 s{sWV}, {n}")
        a(f"s_cbranch_scc1 {lab}")

    def store(self, data, n, voff, soff, srd=RWS, imm=0, flags="sc1"):
        a = self.a
        op = {1: "dword", 2: "dwordx2", 4: "dwordx4"}[n]
        d = f"v{data}" if n == 1 else vr(data, n)
        l = None
        if self.dry:
            l = a.newlabel("L_ns"); self.skip_if_dry(l)
        a(f"buffer_store_{op} {d}, v{voff}, {sr(srd,4)}, {soff} offen offset:{imm} {flags}")
        if l: a.label(l)

    def poll(self, groups, tmp, bad="-1", words=None, gate=None, tail=True):
        a = self.a
        done = a.newlabel("L_pdone"); top = a.newlabel("L_poll")
        if tail: self.skip_if_dry(done)
        for k in range(len(groups)):
            a(f"s_mov_b64 s[{sM+2*k}:{sM+2*k+1}], -1")
        a.label(top)
        for k, grp in enumerate(groups):
            sk = a.newlabel("L_psk")
            a(f"s_mov_b64 exec, s[{sM+2*k}:{sM+2*k+1}]")
            a(f"s_cbranch_execz {sk}")
            for (dst, n, voff, soff, imm) in grp:
                op = {1: "dword", 2: "dwordx2", 4: "dwordx4"}[n]
                d = f"v{dst}" if n == 1 else vr(dst, n)
                a(f"buffer_load_{op} {d}, v{voff}, {sr(RWS,4)}, {soff} offen offset:{imm} sc1 ;POLL")
            a.label(sk)
        a("s_mov_b64 exec, -1")
        a("s_waitcnt vmcnt(0)")
        for k, grp in enumerate(groups):
            if words is None:
                ws = [dst + i for (dst, n, _, _, _) in grp for i in range(n)]
                a(f"v_max_u32 v{tmp}, v{ws[0]}, v{ws[1]}")
                i = 2
                while i < len(ws):
                    if i + 1 < len(ws):
                        a(f"v_max3_u32 v{tmp}, v{tmp}, v{ws[i]}, v{ws[i+1]}"); i += 2
                    else:
                        a(f"v_max_u32 v{tmp}, v{tmp}, v{ws[i]}"); i += 1
                a(f"v_cmp_eq_u32 s[{sM+2*k}:{sM+2*k+1}], -1, v{tmp}")
            else:
                ws = words[k]
                a(f"v_xor_b32 v{tmp}, s{sTAG}, v{ws[0]}")
                for w in ws[1:]:
                    a(f"v_xor_b32 v{tmp+1}, s{sTAG}, v{w}")
                    a(f"v_or_b32 v{tmp}, v{tmp}, v{tmp+1}")
                a(f"v_cmp_ne_u32 s[{sM+2*k}:{sM+2*k+1}], 0, v{tmp}")
        a("s_nop 0")
        a(f"s_mov_b64 vcc, s[{sM}:{sM+1}]")
        for k in range(1, len(groups)):
            a(f"s_or_b64 vcc, vcc, s[{sM+2*k}:{sM+2*k+1}]")
        a(f"s_cmp_eq_u64 vcc, 0")
        a(f"s_cbranch_scc1 {done}")
        a(f"s_sub_u32 s{sTO}, s{sTO}, 1")
        a(f"s_cbranch_scc1 L_exit")
        if gate == "sleep":
            a("s_sleep 8")
        elif not tail and self.qsleep:
            a(f"s_sleep {self.qsleep}")
        a(f"s_branch {top}")
        a.label(done)

    def poll2(self, groups, tmp):
        a = self.a
        done = a.newlabel("L_pdone"); top = a.newlabel("L_poll")
        n = sum(len(g) for g in groups)
        def issue(first):
            for k, grp in enumerate(groups):
                if not first:
                    a(f"s_or_b64 exec, s[{sM+2*k}:{sM+2*k+1}], 1")
                for (dst, nd, voff, soff, imm) in grp:
                    op = {1: "dword", 2: "dwordx2", 4: "dwordx4"}[nd]
                    d = f"v{dst}" if nd == 1 else vr(dst, nd)
                    a(f"buffer_load_{op} {d}, v{voff}, {sr(RWS,4)}, {soff} offen offset:{imm} sc1")
            if not first: a("s_mov_b64 exec, -1")
        issue(True)
        for k in range(len(groups)):
            a(f"s_mov_b64 s[{sM+2*k}:{sM+2*k+1}], -1")
        a(f"s_sleep {self.pslp}")
        a.label(top)
        issue(False)
        a(f"s_waitcnt vmcnt({n})")
        for k, grp in enumerate(groups):
            ws = [dst + i for (dst, nd, _, _, _) in grp for i in range(nd)]
            a(f"v_max_u32 v{tmp}, v{ws[0]}, v{ws[1]}")
            i = 2
            while i < len(ws):
                if i + 1 < len(ws):
                    a(f"v_max3_u32 v{tmp}, v{tmp}, v{ws[i]}, v{ws[i+1]}"); i += 2
                else:
                    a(f"v_max_u32 v{tmp}, v{tmp}, v{ws[i]}"); i += 1
            a(f"v_cmp_eq_u32 s[{sM+2*k}:{sM+2*k+1}], -1, v{tmp}")
        a(f"s_sub_u32 s{sTO}, s{sTO}, 1")
        a(f"s_cbranch_scc1 L_exit")
        a(f"s_or_b64 vcc, s[{sM}:{sM+1}], s[{sM+2}:{sM+3}]")
        for k in range(2, len(groups)):
            a(f"s_or_b64 vcc, vcc, s[{sM+2*k}:{sM+2*k+1}]")
        a(f"s_cbranch_scc1 {top}")

    def prepoll(self, dst, n, voff, soff, tmp, maxbad):
        a = self.a
        done = a.newlabel("L_gdone"); top = a.newlabel("L_gate")
        self.skip_if_dry(done)
        a.label(top)
        op = {1: "dword", 2: "dwordx2", 4: "dwordx4"}[n]
        d = f"v{dst}" if n == 1 else vr(dst, n)
        a(f"buffer_load_{op} {d}, v{voff}, {sr(RWS,4)}, {soff} offen sc1 ;POLL")
        a("s_waitcnt vmcnt(0)")
        a(f"v_cmp_eq_u32 vcc, -1, v{dst}")
        a("s_nop 0")
        a(f"s_bcnt1_i32_b64 s12, vcc")
        a(f"s_cmp_le_u32 s12, {maxbad}")
        a(f"s_cbranch_scc1 {done}")
        a(f"s_sub_u32 s{sTO}, s{sTO}, 1")
        a(f"s_cbranch_scc1 L_exit")
        a("s_sleep 8")
        a(f"s_branch {top}")
        a.label(done)

    def check_flags(self):
        a = self.a
        ok = a.newlabel("L_flok")
        self.skip_if_dry(ok)
        a(f"v_xor_b32 v8, s{sTAG}, v{FL}")
        for i in range(1, 4):
            a(f"v_xor_b32 v9, s{sTAG}, v{FL+i}")
            a(f"v_or_b32 v8, v8, v9")
        a("v_cmp_ne_u32 vcc, 0, v8")
        a("s_nop 0")
        a("s_cmp_eq_u64 vcc, 0")
        a(f"s_cbranch_scc1 {ok}")
        a(f"v_lshlrev_b32 v4, 4, v{vLane}")
        a(f"s_mov_b32 s13, {WS_FLAG:#x}")
        self.poll([[(FL, 4, 4, "s13", 0)]], 8, words=[[FL, FL + 1, FL + 2, FL + 3]], gate="sleep")
        a.label(ok)

    def ldK(self, slot):
        so = sOF0 + slot if slot < 2 else sE + slot - 2
        for j in range(4):
            self.a(f"buffer_load_dwordx4 {vr(RING+32*slot+4*j,4)}, v{vKo}, {sr(RK,4)}, s{so} offen offset:{j*64} {self.pol}")
    def ldV(self, slot):
        so = sOF0 + slot if slot < 2 else sE + slot - 2
        for t in range(4):
            self.a(f"buffer_load_dwordx4 {vr(RING+32*slot+16+4*t,4)}, v{vVo}, {sr(RV,4)}, s{so} offen offset:{t*1024} {self.pol}")

    def unit(self, d):
        a = self.a
        K = RING + 32 * d; V = K + 16
        ring = d < 2
        if ring:
            a(f"s_cmp_ge_u32 s{sOF0+d}, s{RK+2}")
            a("s_cbranch_scc1 L_epi")
            a("s_mov_b64 exec, 1")
            a(f"ds_add_rtn_u32 v{vTk}, v{vTa}, v{vT1}")
            a("s_mov_b64 exec, -1")
            a(f"s_waitcnt vmcnt({8*D-4})")
        else:
            a(f"s_cmp_ge_u32 s{sE+d-2}, s{RK+2}")
            a("s_cbranch_scc1 L_loop")
        for j in range(4):
            c = "0" if j == 0 else vr(S, 4)
            a(f"v_mfma_f32_16x16x32_bf16 {vr(S,4)}, {vr(K+4*j,4)}, {vr(Q+4*j,4)}, {c}")
            if j == 1 and ring:
                a("s_waitcnt lgkmcnt(0)")
                a(f"v_readfirstlane_b32 s{sOF0+d}, v{vTk}")
        if ring:
            a(f"s_cmp_ge_u32 s{sOF0+d}, s{sT0}")
            a(f"s_cbranch_scc1 L_slow{d}")
            a(f"s_add_u32 s{sOF0+d}, s{sOF0+d}, s{sSLAB}")
            a(f"s_and_b32 s{sOF0+d}, s{sOF0+d}, 0x7fffff")
            if self.park < 8: a(f"s_or_b32 s{sOF0+d}, s{sOF0+d}, s29")
            a.label(f"L_back{d}")
            self.ldK(d)
            a("s_nop 0")
        else:
            a("s_nop 7")
        for r in range(4):
            a(f"v_cvt_pk_bf16_f32 v{R+r}, 0, v{S+r}")
        for r in range(4):
            a(f"v_mul_f32 v{R+r}, s{sSC}, v{R+r}")
        for r in range(4):
            a(f"v_cvt_pk_bf16_f32 v{R+r}, 0, v{R+r}")
        a(f"v_max3_f32 v{vT}, v{R}, v{R+1}, v{R+2}")
        a(f"v_max_f32 v{vT}, v{vT}, v{R+3}")
        xhalf32(a, vT, vU, "max")
        xrow16(a, vT, vU, "max")
        a(f"v_mul_f32 v{vT}, s{sL2E}, v{vT}")
        a(f"v_max_f32 v{vCn}, v{vC}, v{vT}")
        a(f"v_sub_f32 v{vAa}, v{vC}, v{vCn}")
        a(f"v_exp_f32 v{vAa}, v{vAa}")
        for r in range(4):
            a(f"v_fma_f32 v{R+r}, v{R+r}, s{sL2E}, -v{vCn}")
        a(f"v_mov_b32 v{vC}, v{vCn}")
        for r in range(4):
            a(f"v_exp_f32 v{R+r}, v{R+r}")
        for g in range(4):
            a(f"v_mov_b32_dpp v{vAo}, v{vAa} row_newbcast:{4*g} row_mask:{1<<g:#x} bank_mask:0xf")
        a(f"v_mul_f32 v{vL}, v{vL}, v{vAa}")
        for t in range(4):
            a(f"v_cvt_pk_bf16_f32 v{vT}, v{R+t}, v{R+t}")
            a(f"v_and_b32 v{AW+4*t+2}, v{vT}, v{vM0}")
            a(f"v_and_b32 v{AW+4*t+3}, v{vT}, v{vM1}")
        for r in range(8):
            a(f"v_mul_f32 v{O0+r}, v{O0+r}, v{vAo}")
        a(f"v_add_f32 v{R}, v{R}, v{R+1}")
        a(f"v_add_f32 v{R+2}, v{R+2}, v{R+3}")
        a(f"v_add_f32 v{vL}, v{vL}, v{R}")
        a(f"v_add_f32 v{vL}, v{vL}, v{R+2}")
        if ring:
            a(f"s_waitcnt vmcnt({8*D-4})")
        for t in range(4):
            a(f"v_mfma_f32_16x16x32_bf16 {vr(O0,4)}, {vr(AW+4*t+2,4)}, {vr(V+4*t,4)}, {vr(O0,4)}")
            a(f"v_mfma_f32_16x16x32_bf16 {vr(O1,4)}, {vr(AW+4*t,4)}, {vr(V+4*t,4)}, {vr(O1,4)}")
        if ring: self.ldV(d)
        if ring: self.proghook()

    def proghook(self):
        a = self.a
        if not self.prog: return
        l = a.newlabel("L_np")
        a(f"v_readfirstlane_b32 s28, v{vTk}")
        a("s_and_b32 s12, s28, 0x7000")
        a(f"s_cbranch_scc1 {l}")
        a("s_memrealtime s[26:27]")
        a(f"s_lshr_b32 s12, s28, 13")
        a("s_lshl_b32 s13, s2, 7")
        a("s_add_u32 s13, s13, s12")
        a(f"s_add_u32 s13, s13, {STAMP+0x20000:#x}")
        a("s_waitcnt lgkmcnt(0)")
        a("v_mov_b32 v7, s26")
        a("v_mov_b32 v4, 0")
        a("s_mov_b64 exec, 1")
        a(f"buffer_store_dword v7, v4, {sr(RWS,4)}, s13 offen")
        a("s_mov_b64 exec, -1")
        a.label(l)


    def slow(self, t, back):
        a = self.a
        spin = a.newlabel("L_sp")
        a(f"s_sub_u32 s{t}, s{t}, s{sSB}")
        a(f"s_lshr_b32 s12, s{t}, {self.cshift}")
        a("s_lshl_b32 s12, s12, 2")
        a("v_mov_b32 v4, s12")
        a(f"s_and_b32 s{t}, s{t}, {self.chunk*4096-1:#x}")
        a.label(spin)
        a(f"ds_read_b32 v7, v4 offset:{LCH}")
        a(f"s_sub_u32 s{sTO}, s{sTO}, 1")
        a("s_cbranch_scc1 L_exit")
        a("s_waitcnt lgkmcnt(0)")
        a("v_readfirstlane_b32 s12, v7")
        a(f"s_cmp_eq_u32 s12, {EMPTY:#x}")
        a(f"s_cbranch_scc1 {spin}")
        a(f"s_add_u32 s{t}, s{t}, s12")
        a(f"s_branch {back}")

    def agent(self):
        a = self.a
        a("s_setprio 3")
        a("s_and_b32 s13, s2, 15")
        a.label("L_agf")
        a("s_waitcnt vmcnt(0)")
        a(f"v_cmp_ne_u32 vcc, s{sTAG}, v{vPF}")
        a("s_nop 0")
        a("s_cmp_eq_u64 vcc, 0")
        a("s_cbranch_scc1 L_ag0")
        a(f"s_sub_u32 s{sTO}, s{sTO}, 1")
        a("s_cbranch_scc1 L_exit")
        a("s_lshl_b32 s12, s13, 2")
        a(f"s_add_u32 s12, s12, {WS_FLAG:#x}")
        a("v_mov_b32 v4, 0")
        a(f"buffer_load_dword v{vPF}, v4, {sr(RWS,4)}, s12 offen sc1")
        a("s_branch L_agf")
        a.label("L_ag0")
        a("s_lshl_b32 s13, s13, 8")
        a(f"s_add_u32 s13, s13, {WS_POOL:#x}")
        a(f"s_sub_u32 s16, s{sSB}, {self.look*4096}")
        a("s_mov_b32 s17, 0")
        a("s_and_b32 s12, s2, 12")
        a(f"s_mov_b32 s30, {(2*self.dwo+2*self.dffn)*4096:#x}")
        a("s_cmp_eq_u32 s12, 12")
        a(f"s_cmov_b32 s30, {(2*self.dwo+self.dffn)*4096:#x}")
        a(f"s_mov_b32 s31, {(128-self.frag)*4096:#x}")
        a("v_mov_b32 v8, 0")
        a(f"v_mov_b32 v9, {INVALID:#x}")
        a.label("L_ag1")
        a(f"ds_read_b32 v7, v{vTa}")
        a(f"s_sub_u32 s{sTO}, s{sTO}, 1")
        a("s_cbranch_scc1 L_exit")
        a("s_waitcnt lgkmcnt(0)")
        a("v_readfirstlane_b32 s12, v7")
        a("s_cmp_ge_u32 s12, s16")
        a("s_cbranch_scc1 L_ag2")
        a("s_sleep 3")
        a("s_branch L_ag1")
        a.label("L_ag2")
        a("s_sub_u32 s12, s12, s16")
        a(f"s_lshr_b32 s12, s12, {self.cshift}")
        a("s_add_u32 s12, s12, 1")
        a("s_min_u32 s12, s12, 16")
        a(f"v_cmp_gt_u32 vcc, s12, v{vLane}")
        a(f"v_mov_b32 v7, {self.chunk*4096:#x}")
        a(f"v_add_u32 v4, s17, v{vLane}")
        a("v_lshlrev_b32 v4, 2, v4")
        a("s_mov_b64 exec, vcc")
        a(f"buffer_atomic_add v7, v8, {sr(RWS,4)}, s13 offen sc0 sc1")
        a("s_add_u32 s17, s17, s12")
        a(f"s_lshl_b32 s12, s12, {self.cshift}")
        a("s_add_u32 s16, s16, s12")
        a("s_waitcnt vmcnt(0)")
        F_ = self.frag; U = 4096
        a("v_subrev_u32 v10, s30, v7")
        a(f"v_lshrrev_b32 v11, {12+F_.bit_length()-1}, v10")
        a("v_lshlrev_b32 v11, 19, v11")
        a(f"v_and_b32 v10, {F_*U-1:#x}, v10")
        a(f"v_add3_u32 v10, v10, v11, s31")
        segs = [(0, 2, self.dwo), (self.dwo, 3, self.dwo), (2 * self.dwo, 4, self.dffn), (2 * self.dwo + self.dffn, 5, self.dffn)]
        a(f"v_add_u32 v11, {((segs[0][1]+1)*128-F_-segs[0][2]-segs[0][0])*U:#x}, v7")
        for st, sg, d in segs[1:]:
            if self.dwo + self.dffn == 0: break
            a(f"v_cmp_le_u32 vcc, {st*U:#x}, v7")
            a(f"v_add_u32 v12, {((sg+1)*128-F_-d-st)*U:#x}, v7")
            a("s_nop 0")
            a("v_cndmask_b32 v11, v11, v12, vcc")
        a("v_cmp_le_u32 vcc, s30, v7")
        a(f"s_add_u32 s12, s30, {16*F_*U:#x}")
        a("s_nop 0")
        a("v_cndmask_b32 v11, v11, v10, vcc")
        a("v_cmp_le_u32 vcc, s12, v7")
        a("v_add_u32 v7, s25, v11")
        a("v_and_b32 v7, 0x7fffff, v7")
        a("v_cndmask_b32 v7, v7, v9, vcc")
        a(f"ds_write_b32 v4, v7 offset:{LCH}")
        a("s_mov_b64 exec, -1")
        a("s_cmp_eq_u64 vcc, 0")
        a("s_cbranch_scc1 L_ag1")
        a(f"v_add_u32 v4, s17, v{vLane}")
        a("v_lshlrev_b32 v4, 2, v4")
        a(f"ds_write_b32 v4, v9 offset:{LCH}")
        a("s_setprio 0")

    def ao_addr(self):
        a = self.a
        a(f"s_lshl_b32 s12, s{sB}, 5")
        a(f"s_lshl_b32 s13, s{sHKV}, 2")
        a("s_add_u32 s12, s12, s13")
        a("s_lshl_b32 s13, s12, 13")
        a(f"s_lshl_b32 vcc_lo, s{sS}, 9")
        a("s_add_u32 s13, s13, vcc_lo")
        a(f"s_add_u32 s13, s13, {WS_AO:#x}")
        a("s_lshl_b32 s12, s12, 7")
        a(f"s_lshl_b32 vcc_lo, s{sS}, 3")
        a("s_add_u32 s12, s12, vcc_lo")
        a(f"s_add_u32 s12, s12, {WS_AM:#x}")

    def c_addr(self, v, bshift):
        a = self.a
        a(f"v_lshrrev_b32 v{v}, 1, v{vG}")
        a(f"v_lshlrev_b32 v{v}, {bshift}, v{v}")
        a(f"v_lshl_add_u32 v{v}, v{vI}, 5, v{v}")
        a(f"v_and_b32 v7, 1, v{vG}")
        a(f"v_lshl_add_u32 v{v}, v7, 4, v{v}")

    def xwave_reduce(self, ACC, T, done):
        a = self.a
        a("v_lshlrev_b32 v4, 4, v0")
        a("s_nop 7")
        a(f"ds_write_b128 v4, {vr(ACC,4)} offset:{LR}")
        a("s_waitcnt lgkmcnt(0)")
        self.barrier()
        self.only_waves_below(1, done)
        a(f"v_lshlrev_b32 v4, 4, v{vLane}")
        for w in range(8):
            a(f"ds_read_b128 {vr(T+4*w,4)}, v4 offset:{LR+1024*w}")
        for w in range(1, 8):
            a(f"s_waitcnt lgkmcnt({7-w})")
            for r in range(4):
                a(f"v_add_f32 v{T+r}, v{T+r}, v{T+4*w+r}")

    def gen(self):
        a = self.a
        name = NAME + "_kernel"
        kernel_begin(a, name)
        a("s_cmp_ge_u32 s2, 256")
        a("s_cbranch_scc1 L_exit")
        self.stamp(0)
        load_ptrs(a)
        if self.transpose:
            a("s_and_b32 s3, s2, 15")
            a("s_lshl_b32 s3, s3, 4")
            a("s_lshr_b32 s2, s2, 4")
            a("s_or_b32 s2, s2, s3")
        a("v_and_b32 v1, 63, v0")
        a("v_lshrrev_b32 v2, 4, v1")
        a("v_and_b32 v3, 15, v0")
        a("v_lshrrev_b32 v4, 6, v0")
        a("s_mov_b32 s6, 0xff00ff00")
        a("s_mov_b32 s7, 0xff00ff00")
        a("v_readfirstlane_b32 s3, v4")
        a(f"s_and_b32 s{sHKV}, s2, 7")
        a(f"s_bfe_u32 s{sB}, s2, 0x10003")
        a(f"s_lshr_b32 s{sS}, s2, 4")
        a(f"s_lshr_b32 s{sJ}, s2, 3")
        a(f"s_mov_b32 s{sL2E}, {LOG2E:#x}")
        a(f"s_mov_b32 s{sSC}, {SCALE:#x}")
        a(f"s_mov_b32 s{sDRY}, 0")
        a(f"s_mov_b32 s{sTO}, 0x200000")
        a(f"s_mov_b32 s{sROLE}, 0")
        a("s_cmp_lt_u32 s2, 92")
        a(f"s_cselect_b32 s{sROLE}, 3, s{sROLE}")
        a("s_cmp_lt_u32 s2, 64")
        a(f"s_cselect_b32 s{sROLE}, 2, s{sROLE}")
        a("s_cmp_lt_u32 s2, 32")
        a(f"s_cselect_b32 s{sROLE}, 1, s{sROLE}")
        a(f"s_and_b32 s{sIDX}, s{sJ}, 3")
        if self.notail: a(f"s_mov_b32 s{sROLE}, 0")
        F_ = self.frag
        a(f"s_mov_b32 s{sM+1}, {(128-F_)*4096:#x}")
        a(f"s_cmp_eq_u32 s{sROLE}, 2")
        a(f"s_cmov_b32 s{sM+1}, {(128-F_-self.dwo)*4096:#x}")
        a(f"s_cmp_eq_u32 s{sROLE}, 3")
        a(f"s_cmov_b32 s{sM+1}, {(128-F_-self.dffn)*4096:#x}")
        a(f"s_lshl_b32 s{sM+2}, s{sS}, 19")
        a(f"s_lshl_b32 s13, s{sB}, 3")
        a(f"s_add_u32 s13, s13, s{sHKV}")
        a(f"s_lshl_b32 s{sM}, s13, 23")
        a("v_and_b32 v5, 3, v3")
        a("v_lshlrev_b32 v5, 10, v5")
        a("v_lshrrev_b32 v6, 2, v3")
        a("v_lshl_add_u32 v5, v6, 8, v5")
        a("v_lshl_add_u32 v5, v2, 4, v5")
        a("v_lshlrev_b32 v6, 8, v2")
        a("v_lshl_add_u32 v6, v3, 4, v6")
        a("s_cmp_ge_u32 s3, 4")
        a("s_cbranch_scc1 L_noprio")
        a("s_setprio 3")
        a.label("L_noprio")
        a(f"s_mov_b32 s{sIDX+1}, s3")
        a(f"v_mov_b32 v{vTa}, {LCNT}")
        a(f"v_mov_b32 v{vT1}, 0x1000")
        a("v_mov_b32 v8, 0")
        a(f"v_mov_b32 v9, {1 if self.noq else 0}")
        a(f"ds_write_b64 v{vTa}, v[8:9]")
        for r in range(4):
            a(f"v_mov_b32 v{12+r}, {EMPTY:#x}")
        a(f"v_lshlrev_b32 v4, 4, v{vLane}")
        a(f"ds_write_b128 v4, v[12:15] offset:{LCH}")
        a("s_waitcnt lgkmcnt(0)")
        a(f"s_load_dword s{sTAG}, s[{P_WS}:{P_WS+1}], {WS_EPOCH}")
        make_srd(a, RX, P_X, 2048)
        X = 8; Y = 16; F = 32
        for rr, p in ((RK, P_K), (RV, P_V)):
            a(f"s_add_u32 s{rr}, s{p}, s{sM}")
            a(f"s_addc_u32 s{rr+1}, s{p+1}, 0")
            a(f"s_and_b32 s{rr+1}, s{rr+1}, 0xffff")
            a(f"s_mov_b32 s{rr+2}, 0x800000")
            a(f"s_mov_b32 s{rr+3}, 0x00020000")
        make_srd(a, RWS, P_WS, 0x400000 if self.stamps else WS_END)
        a(f"s_mov_b32 s20, s{sM+2}")
        a(f"s_mov_b32 s21, s{sM+1}")
        if self.noprod:
            a("s_barrier")
            a("s_branch L_noqld")
        a("s_cmp_lt_u32 s2, 128")
        a("s_cbranch_scc1 L_noprod")
        a("s_cmp_ge_u32 s3, 2")
        a("s_cbranch_scc1 L_noprod")
        make_srd(a, RW1, P_WQ, 512 * 4096 * 2)
        a(f"v_lshlrev_b32 v4, 5, v{vLane}")
        a(f"buffer_load_dwordx4 {vr(X,4)}, v4, {sr(RX,4)}, 0 offen")
        a(f"buffer_load_dwordx4 {vr(X+4,4)}, v4, {sr(RX,4)}, 0 offen offset:16")
        a("v_lshrrev_b32 v4, 3, v3")
        a("v_lshlrev_b32 v4, 10, v4")
        a("v_lshl_add_u32 v4, v2, 5, v4")
        a(f"s_and_b32 s{sJ}, s2, 31")
        a("s_bfe_u32 s13, s2, 0x20005")
        a("s_lshl_b32 s13, s13, 1")
        a(f"s_add_u32 s{sM+2}, s13, s3")
        a(f"s_lshl_b32 s12, s{sM+2}, 7")
        a(f"buffer_load_dwordx4 {vr(Y,4)}, v4, {sr(RX,4)}, s12 offen")
        a(f"buffer_load_dwordx4 {vr(Y+4,4)}, v4, {sr(RX,4)}, s12 offen offset:16")
        a(f"s_lshl_b32 s13, s{sM+2}, 19")
        a(f"s_lshl_b32 s12, s{sJ}, 8")
        a("s_add_u32 s13, s13, s12")
        a("v_lshlrev_b32 v4, 17, v2")
        a("v_lshl_add_u32 v4, v3, 4, v4")
        for t in range(16):
            a(f"buffer_load_dwordx4 {vr(RING+4*t,4)}, v4, {sr(RW1,4)}, s13 offen nt")
            a("s_add_u32 s13, s13, 8192")
        a("s_barrier")
        make_sels(a, SEL, 3, 48, 49, 15)
        a("v_lshrrev_b32 v4, 1, v2")
        a("v_lshlrev_b32 v4, 13, v4")
        a("v_lshl_add_u32 v4, v3, 6, v4")
        a("v_and_b32 v7, 1, v2")
        a("v_lshl_add_u32 v4, v7, 5, v4")
        a(f"s_lshl_b32 s13, s{sJ}, 14")
        a(f"s_lshl_b32 s12, s{sM+2}, 10")
        a("s_add_u32 s13, s13, s12")
        a(f"s_add_u32 s13, s13, {WS_QP:#x}")
        a("s_waitcnt vmcnt(16)")
        ln_stats(a, X, F, 50, 51, 48, 49, 6)
        ln_apply(a, Y, 8, 50, 51, 48, 49)
        a("s_waitcnt lgkmcnt(0)")
        a(f"s_add_u32 s12, s{sTAG}, {TAGK:#x}")
        for r in range(4):
            a(f"v_mov_b32 v{9+2*r}, s12")
        gemv_mfma(a, Y, 16, RING, SEL, 52, 56, 60, wait=lambda t: a(f"s_waitcnt vmcnt({15-t})"))
        a("s_nop 7")
        for r in range(4):
            a(f"v_mov_b32 v{8+2*r}, v{60+r}")
        a(f"buffer_store_dwordx4 v[8:11], v4, {sr(RWS,4)}, s13 offen sc1")
        a(f"buffer_store_dwordx4 v[12:15], v4, {sr(RWS,4)}, s13 offen offset:16 sc1")
        self.stamp(6)
        a("s_branch L_noqld")
        a.label("L_noprod")
        a("s_barrier")
        a("s_cmp_ge_u32 s2, 32")
        a("s_cbranch_scc1 L_noqld")
        a("s_cmp_ge_u32 s3, 2")
        a(f"s_cbranch_scc1 {'L_qbar2' if self.quiet else 'L_noqld'}")
        a(f"v_lshlrev_b32 v4, 4, v{vLane}")
        a("s_lshl_b32 s13, s2, 14")
        a("s_lshl_b32 s12, s3, 13")
        a("s_add_u32 s13, s13, s12")
        a(f"s_add_u32 s13, s13, {WS_QP:#x}")
        a("s_add_u32 s12, s13, 0x1000")
        a("s_waitcnt lgkmcnt(0)")
        a(f"s_add_u32 s{sTAG}, s{sTAG}, {TAGK:#x}")
        groups = [[(8 + 4 * k, 4, 4, "s13" if k < 4 else "s12", (k % 4) * 1024) for k in (2 * i, 2 * i + 1)] for i in range(4)]
        words = [[9 + 8 * i, 11 + 8 * i, 13 + 8 * i, 15 + 8 * i] for i in range(4)]
        self.poll(groups, 40, words=words, tail=False)
        for k in range(1, 8):
            a(f"v_add_f32 v8, v8, v{8+4*k}")
            a(f"v_add_f32 v10, v10, v{10+4*k}")
        a(f"v_lshlrev_b32 v4, 3, v{vLane}")
        a("s_lshl_b32 s13, s3, 14")
        a("s_lshl_b32 s12, s2, 9")
        a("s_add_u32 s13, s13, s12")
        a(f"s_add_u32 s13, s13, {WS_QG:#x}")
        a("v_cvt_pk_bf16_f32 v8, v8, v10")
        a(f"buffer_store_dwordx2 v[8:9], v4, {sr(RWS,4)}, s13 offen sc1")
        a(f"s_sub_u32 s{sTAG}, s{sTAG}, {TAGK:#x}")
        self.stamp(6)
        if self.quiet:
            a.label("L_qbar2")
            a("s_barrier")
        a.label("L_noqld")
        a(f"s_cmp_lg_u32 s{sROLE}, 3")
        a("s_cbranch_scc1 L_idx")
        a(f"s_sub_u32 s{sIDX}, s2, 64")
        a.label("L_idx")
        make_srd(a, ROUT, P_OUT, 2048)
        a(f"s_cmp_lg_u32 s3, {44 if self.noclean else 3}")
        a("s_cbranch_scc1 L_noclean")
        for r in range(4):
            a(f"v_mov_b32 v{8+r}, -1")
        self.ao_addr()
        a(f"v_lshrrev_b32 v4, 5, v{vLane}")
        a("v_lshlrev_b32 v4, 13, v4")
        a(f"v_and_b32 v7, 31, v{vLane}")
        a("v_lshl_add_u32 v4, v7, 4, v4")
        a(f"buffer_store_dwordx4 v[8:11], v4, {sr(RWS,4)}, s13 offen sc1")
        a("s_add_u32 s13, s13, 0x4000")
        a(f"buffer_store_dwordx4 v[8:11], v4, {sr(RWS,4)}, s13 offen sc1")
        a(f"v_and_b32 v4, 3, v{vLane}")
        a("v_lshlrev_b32 v4, 7, v4")
        a(f"buffer_store_dwordx2 v[8:9], v4, {sr(RWS,4)}, s12 offen sc1")
        a(f"s_cmp_eq_u32 s{sROLE}, 2")
        a("s_cbranch_scc0 L_cl_n2")
        self.c_addr(4, 11)
        a(f"s_lshl_b32 s13, s{sHKV}, 12")
        a(f"s_lshl_b32 s12, s{sIDX}, 9")
        a("s_add_u32 s13, s13, s12")
        a(f"s_add_u32 s13, s13, {WS_WP:#x}")
        a(f"buffer_store_dwordx4 v[8:11], v4, {sr(RWS,4)}, s13 offen sc1")
        a.label("L_cl_n2")
        a(f"s_cmp_eq_u32 s{sROLE}, 3")
        a("s_cbranch_scc0 L_cl_n3")
        a(f"v_lshlrev_b32 v4, 4, v{vLane}")
        a(f"s_lshl_b32 s13, s{sIDX}, 13")
        a(f"s_add_u32 s13, s13, {WS_DP:#x}")
        for k in range(8):
            a(f"buffer_store_dwordx4 v[8:11], v4, {sr(RWS,4)}, s13 offen offset:{(k%4)*1024} sc1")
            if k == 3: a("s_add_u32 s13, s13, 4096")
        a.label("L_cl_n3")
        a("s_cmp_ge_u32 s2, 16")
        a("s_cbranch_scc1 L_cl_n4")
        a("v_mov_b32 v4, 0")
        a("s_lshl_b32 s13, s2, 8")
        a(f"s_add_u32 s13, s13, {WS_POOL:#x}")
        a(f"buffer_store_dword v4, v4, {sr(RWS,4)}, s13 offen sc1")
        a.label("L_cl_n4")
        a("s_lshl_b32 s13, s2, 2")
        a(f"s_add_u32 s13, s13, {WS_FLAG:#x}")
        a("v_mov_b32 v4, 0")
        a("s_waitcnt vmcnt(0) lgkmcnt(0)")
        a(f"s_add_u32 s12, s{sTAG}, {TAGK:#x}")
        a("v_mov_b32 v8, s12")
        a("s_mov_b64 exec, 1")
        a(f"buffer_store_dword v8, v4, {sr(RWS,4)}, s13 offen sc1")
        a("s_mov_b64 exec, -1")
        a.label("L_noclean")
        if self.stamps:
            a("s_cmp_lt_u32 s3, 2")
            a("s_cbranch_scc1 L_nst6")
            self.stamp(6)
            a.label("L_nst6")
        a(f"s_cmp_lt_u32 s{sROLE}, 2")
        a("s_cbranch_scc1 L_ring")
        a(f"s_cmp_eq_u32 s{sROLE}, 3")
        a("s_cbranch_scc1 L_ffn_w")
        make_srd(a, RW1, P_WO, 4096 * 512 * 2)
        a(f"s_lshl_b32 s13, s{sHKV}, 19")
        a("s_lshl_b32 s12, s3, 16")
        a("s_add_u32 s13, s13, s12")
        a(f"s_lshl_b32 s12, s{sIDX}, 8")
        a("s_add_u32 s13, s13, s12")
        a("v_lshlrev_b32 v4, 14, v2")
        a("v_lshl_add_u32 v4, v3, 4, v4")
        for t in range(16):
            a(f"buffer_load_dwordx4 {vr(W+4*t,4)}, v4, {sr(RW1,4)}, s13 offen offset:{(t%4)*1024} nt")
            if t % 4 == 3: a("s_add_u32 s13, s13, 4096")
        a("s_branch L_sels")
        a.label("L_ffn_w")
        make_srd(a, RW1, P_WG, 512 * 1792 * 2)
        make_srd(a, RW2, P_WU, 512 * 1792 * 2)
        make_srd(a, RWD, P_WD, 1792 * 512 * 2)
        a("s_mul_i32 s13, s3, 64*3584")
        a(f"s_lshl_b32 s12, s{sIDX}, 7")
        a("s_add_u32 s13, s13, s12")
        a("s_mov_b32 s12, 16*3584")
        a("v_mul_lo_u32 v4, v2, s12")
        a("v_and_b32 v7, 7, v3")
        a("v_lshl_add_u32 v4, v7, 4, v4")
        a("s_mov_b32 s12, s13")
        a("s_not_b64 exec, s[6:7]")
        for t in range(16):
            a(f"buffer_load_dwordx4 {vr(W+4*t,4)}, v4, {sr(RW1,4)}, s13 offen nt")
            a("s_add_u32 s13, s13, 3584")
        a("s_mov_b64 exec, s[6:7]")
        for t in range(16):
            a(f"buffer_load_dwordx4 {vr(W+4*t,4)}, v4, {sr(RW2,4)}, s12 offen nt")
            a("s_add_u32 s12, s12, 3584")
        a("s_mov_b64 exec, -1")
        a(f"s_lshl_b32 s13, s{sIDX}, 16")
        a("s_lshr_b32 s12, s3, 2")
        a("s_lshl_b32 s12, s12, 15")
        a("s_add_u32 s13, s13, s12")
        a("s_and_b32 s12, s3, 3")
        a("s_lshl_b32 s12, s12, 8")
        a("s_add_u32 s13, s13, s12")
        a("v_lshlrev_b32 v4, 13, v2")
        a("v_lshl_add_u32 v4, v3, 4, v4")
        for t in range(8):
            a(f"buffer_load_dwordx4 {vr(WD+4*t,4)}, v4, {sr(RWD,4)}, s13 offen offset:{(t%4)*1024} nt")
            if t % 4 == 3: a("s_add_u32 s13, s13, 4096")
        a.label("L_sels")
        make_sels(a, SEL, 3, 48, 49, 15)
        a("s_barrier")
        a.label("L_ring")
        def draw(dst):
            l1 = a.newlabel("L_df"); l2 = a.newlabel("L_dd")
            a("s_mov_b64 exec, 1")
            a(f"ds_add_rtn_u32 v{vTk}, v{vTa}, v{vT1}")
            a("s_mov_b64 exec, -1")
            a("s_waitcnt lgkmcnt(0)")
            a(f"v_readfirstlane_b32 s{dst}, v{vTk}")
            a("s_nop 0")
            a(f"s_cmp_lt_u32 s{dst}, s{sT0}")
            a(f"s_cbranch_scc1 {l1}")
            self.slow(dst, l2)
            a.label(l1)
            a(f"s_add_u32 s{dst}, s{dst}, s{sSLAB}")
            a(f"s_and_b32 s{dst}, s{dst}, 0x7fffff")
            a.label(l2)
        def cdraw(dst, skip):
            top = a.newlabel("L_cd")
            a.label(top)
            a(f"ds_read_b64 v[8:9], v{vTa}")
            a("s_waitcnt lgkmcnt(0)")
            a("v_readfirstlane_b32 s12, v9")
            a(f"v_readfirstlane_b32 s13, v8")
            a(f"v_add_u32 v9, 0x1000, v8")
            a("s_lshl_b32 s12, s12, 31")
            a("s_or_b32 s12, s12, s13")
            a(f"s_cmp_ge_u32 s12, {64*4096:#x}")
            a(f"s_cbranch_scc1 {skip}")
            a("s_mov_b64 exec, 1")
            a(f"ds_cmpst_rtn_b32 v{vTk}, v{vTa}, v8, v9")
            a("s_mov_b64 exec, -1")
            a("s_waitcnt lgkmcnt(0)")
            a(f"v_readfirstlane_b32 s12, v{vTk}")
            a("s_nop 0")
            a("s_cmp_lg_u32 s12, s13")
            a(f"s_cbranch_scc1 {top}")
            a(f"s_add_u32 s{dst}, s13, s{sSLAB}")
            a(f"s_and_b32 s{dst}, s{dst}, 0x7fffff")
        a("s_and_b32 s25, s2, 15")
        a(f"s_mul_i32 s25, s25, {self.rot*4096:#x}")
        a("s_add_u32 s20, s20, s25")
        a(f"s_mov_b32 s{sSLAB}, s20")
        a(f"s_mov_b32 s{sSB}, s21")
        a(f"s_mov_b32 s{sT0}, s21")
        for e in range(3):
            a(f"s_mov_b32 s{sE+e}, -1")
        a(f"s_mov_b32 s{sE+3}, 0")
        a("s_waitcnt lgkmcnt(0)")
        a(f"s_add_u32 s{sTAG}, s{sTAG}, {TAGK:#x}")
        if not self.nopoll:
            a("s_cmp_eq_u32 s3, 2")
            a("s_cbranch_scc1 L_qg")
        a("s_setprio 0")
        a.label("L_ring2")
        a("s_and_b32 s12, s2, 15")
        a("s_lshl_b32 s12, s12, 2")
        a(f"s_add_u32 s12, s12, {WS_FLAG:#x}")
        a("v_mov_b32 v4, 0")
        a(f"v_mov_b32 v{vPF}, 0")
        for d in range(2):
            ly = a.newlabel("L_y"); lj = a.newlabel("L_j")
            a(f"s_cmp_ge_u32 s3, {8 if self.olddraw & 1 else 7 if self.olddraw & 4 else self.park}")
            a(f"s_cbranch_scc1 {ly}")
            draw(sOF0 + d)
            a(f"s_branch {lj}")
            a.label(ly)
            a(f"s_mov_b32 s{sOF0+d}, {INVALID:#x}")
            cdraw(sOF0 + d, lj)
            a.label(lj)
            self.ldK(d); self.ldV(d)
            self.proghook()
        a(f"s_cmp_ge_u32 s{sROLE}, 2")
        a("s_cbranch_scc1 L_waitq")
        if self.noe_old:
            a(f"s_cmp_lt_u32 s3, {self.park}")
            a("s_cbranch_scc1 L_waitq")
        for e in range(self.ne):
            if self.olddraw & 2:
                a(f"ds_read_b32 v8, v{vTa} offset:4")
                a("s_waitcnt lgkmcnt(0)")
                a("v_readfirstlane_b32 s12, v8")
                a("s_cmp_lg_u32 s12, 0")
                a("s_cbranch_scc1 L_haveq")
                draw(sE + e)
            else:
                cdraw(sE + e, "L_waitq")
            a(f"s_mov_b32 s{sE+3}, 1")
            self.ldK(2 + e); self.ldV(2 + e)
            self.proghook()
        a.label("L_waitq")
        a(f"ds_read_b32 v8, v{vTa} offset:4")
        a("s_waitcnt lgkmcnt(0)")
        a("v_readfirstlane_b32 s12, v8")
        a("s_cmp_lg_u32 s12, 0")
        a("s_cbranch_scc1 L_haveq")
        a(f"s_sub_u32 s{sTO}, s{sTO}, 1")
        a("s_cbranch_scc1 L_exit")
        a("s_sleep 2")
        a("s_branch L_waitq")
        a.label("L_qg")
        a(f"v_lshlrev_b32 v4, 4, v{vLane}")
        a(f"s_lshl_b32 s13, s{sB}, 14")
        a(f"s_lshl_b32 s12, s{sHKV}, 11")
        a("s_add_u32 s13, s13, s12")
        a(f"s_add_u32 s13, s13, {WS_QG:#x}")
        self.poll([[(8, 4, 4, "s13", 0), (12, 4, 4, "s13", 1024)]], 16, words=[[9, 11, 13, 15]], tail=False)
        a("v_mov_b32 v9, v10")
        a("v_mov_b32 v13, v14")
        a(f"v_lshlrev_b32 v4, 3, v{vLane}")
        a(f"ds_write_b64 v4, v[8:9] offset:{LQ}")
        a(f"ds_write_b64 v4, v[12:13] offset:{LQ+512}")
        a("v_mov_b32 v8, 1")
        a("s_waitcnt lgkmcnt(0)")
        a(f"ds_write_b32 v{vTa}, v8 offset:4")
        a("s_setprio 0")
        a("s_branch L_ring2")
        a.label("L_haveq")
        if self.qbar: a("s_barrier")
        self.stamp(1)
        a("v_lshrrev_b32 v4, 2, v3")
        a("v_lshlrev_b32 v4, 8, v4")
        a("v_lshl_add_u32 v4, v2, 4, v4")
        for j in range(4):
            a(f"ds_read_b128 {vr(Q+4*j,4)}, v4 offset:{LQ+j*64}")
        a(f"v_lshlrev_b32 v4, 4, v{vLane}")
        a(f"s_mov_b32 s13, {WS_FLAG:#x}")
        a(f"s_cmp_eq_u32 s{sROLE}, 0")
        a("s_cbranch_scc1 L_nofl")
        a(f"buffer_load_dwordx4 {vr(FL,4)}, v4, {sr(RWS,4)}, s13 offen sc1")
        a.label("L_nofl")
        a("s_and_b32 s12, s2, 15")
        a("s_lshl_b32 s12, s12, 2")
        a(f"s_add_u32 s12, s12, {WS_FLAG:#x}")
        a("v_mov_b32 v4, 0")
        a(f"buffer_load_dword v{vPF}, v4, {sr(RWS,4)}, s12 offen sc1")
        for r in (0, 1, 4, 5, 8, 9, 12, 13, 16, 17):
            a(f"v_mov_b32 v{AW+r}, 0")
        for r in range(8):
            a(f"v_mov_b32 v{O0+r}, 0")
        a(f"v_mov_b32 v{vC}, 0xf149f2ca")
        a(f"v_mov_b32 v{vL}, 0")
        if self.park < 8:
            a("s_mov_b32 s29, 0")
            a(f"s_cmp_lt_u32 s3, {self.park}")
            a("s_cbranch_scc1 L_nopark")
            a(f"s_mov_b32 s29, {INVALID:#x}")
            a(f"s_mov_b32 s{sT0}, -1")
            a(f"v_mov_b32 v{vT1}, 0")
            if self.sprio:
                a("s_branch L_park2")
            a.label("L_nopark")
            if self.sprio:
                a(f"s_setprio {self.sprio}")
                a.label("L_park2")
        a(f"v_and_b32 v{vT}, 1, v3")
        a(f"v_lshlrev_b32 v{vT}, 4, v{vT}")
        a(f"v_mov_b32 v{vU}, 0xffff")
        a(f"v_lshlrev_b32 v{vU}, v{vT}, v{vU}")
        a(f"v_and_b32 v{vT}, 2, v3")
        a(f"v_cmp_eq_u32 vcc, 0, v{vT}")
        a("s_nop 1")
        a(f"v_cndmask_b32 v{vM0}, 0, v{vU}, vcc")
        a(f"v_cndmask_b32 v{vM1}, v{vU}, 0, vcc")
        a("s_waitcnt lgkmcnt(0)")
        a.raw(".p2align 3")
        a.label("L_loop")
        self.unit(0)
        self.unit(1)
        a(f"s_cmp_eq_u32 s{sE+3}, 0")
        a("s_cbranch_scc1 L_loop")
        a(f"s_waitcnt vmcnt({8*D})")
        a.label("L_edisp")
        if self.lazye:
            for e in range(1, self.ne):
                a(f"s_cmp_eq_u32 s{sE+3}, {e+1}")
                a(f"s_cbranch_scc1 L_e{e}")
            for e in range(self.ne):
                a.label(f"L_e{e}")
                a(f"s_mov_b32 s{sE+3}, 0")
                self.unit(2 + e)
                if e + 1 < self.ne:
                    a(f"s_mov_b32 s{sE+3}, {e+2}")
                    a("s_cmp_eq_u32 s29, 0")
                    a("s_cbranch_scc1 L_loop")
        else:
            a(f"s_mov_b32 s{sE+3}, 0")
            for e in range(self.ne):
                self.unit(2 + e)
        a("s_branch L_loop")
        for d in range(2):
            a.label(f"L_slow{d}")
            self.slow(sOF0 + d, f"L_back{d}")
        a.label("L_epi")
        a.raw(";TAIL_BEGIN")
        if self.lazye:
            a("s_waitcnt vmcnt(0)")
            a(f"s_cmp_lg_u32 s{sE+3}, 0")
            a("s_cbranch_scc1 L_edisp")
        a("s_cmp_lg_u32 s3, 7")
        a("s_cbranch_scc1 L_epi2")
        self.agent()
        a.label("L_epi2")
        self.stamp(2)
        xhalf32(a, vL, vU)
        xrow16(a, vL, vU)
        a("s_lshl_b32 s13, s3, 11")
        a("v_lshlrev_b32 v4, 9, v2")
        a("v_lshl_add_u32 v4, v3, 5, v4")
        a("v_add_u32 v4, s13, v4")
        a(f"ds_write_b128 v4, {vr(O0,4)} offset:{LO}")
        a(f"ds_write_b128 v4, {vr(O1,4)} offset:{LO+16}")
        a("v_lshrrev_b32 v4, 2, v3")
        a("v_lshlrev_b32 v4, 5, v4")
        a("s_lshl_b32 s13, s3, 2")
        a("v_add_u32 v4, s13, v4")
        a(f"ds_write_b32 v4, v{vC} offset:{LC}")
        a(f"ds_write_b32 v4, v{vL} offset:{LL}")
        self.ao_addr()
        a("s_waitcnt lgkmcnt(0)")
        self.barrier()
        self.stamp(4)
        self.only_waves_below(2, "L_role")
        CW = 8; LW = 16; OW = 24; OA = 56
        a("v_bfe_u32 v7, v0, 5, 2")
        a("v_lshlrev_b32 v4, 5, v7")
        for w in range(0, NW, 4):
            a(f"ds_read_b128 {vr(CW+w,4)}, v4 offset:{LC+4*w}")
            a(f"ds_read_b128 {vr(LW+w,4)}, v4 offset:{LL+4*w}")
        a("v_and_b32 v4, 127, v0")
        a("v_lshlrev_b32 v4, 4, v4")
        for w in range(NW):
            a(f"ds_read_b128 {vr(OW+4*w,4)}, v4 offset:{LO+2048*w}")
        a(f"s_waitcnt lgkmcnt({NW})")
        a(f"v_max_f32 v{vC}, v{CW}, v{CW+1}")
        for w in range(2, NW, 2):
            a(f"v_max3_f32 v{vC}, v{vC}, v{CW+w}, v{CW+w+1}")
        for w in range(NW):
            a(f"v_sub_f32 v{CW+w}, v{CW+w}, v{vC}")
        for w in range(NW):
            a(f"v_exp_f32 v{CW+w}, v{CW+w}")
        a("v_lshlrev_b32 v4, 13, v7")
        a(f"v_mul_f32 v{vL}, v{CW}, v{LW}")
        for w in range(1, NW):
            a(f"v_fmac_f32 v{vL}, v{CW+w}, v{LW+w}")
        a("v_and_b32 v62, 31, v0")
        a("v_lshl_add_u32 v4, v62, 4, v4")
        for w in range(NW):
            a(f"s_waitcnt lgkmcnt({NW-1-w})")
            for r in range(4):
                if w == 0: a(f"v_mul_f32 v{OA+r}, v{CW}, v{OW+r}")
                else: a(f"v_fmac_f32 v{OA+r}, v{CW+w}, v{OW+4*w+r}")
        for r in range(4):
            a(f"v_min_u32 v{OA+r}, -2, v{OA+r}")
        a(f"v_min_u32 v{vC}, -2, v{vC}")
        a(f"v_min_u32 v{vL}, -2, v{vL}")
        self.store(OA, 4, 4, "s13")
        a("v_lshlrev_b32 v4, 7, v7")
        self.store(vC, 2, 4, "s12")
        a.label("L_role")
        self.stamp(3)
        a(f"s_cmp_eq_u32 s{sROLE}, 0")
        a("s_cbranch_scc1 L_done")
        a("s_waitcnt vmcnt(0)") if not self.dry else None
        if self.dry:
            l = a.newlabel("L_nw"); self.skip_if_dry(l); a("s_waitcnt vmcnt(0)"); a.label(l)
        self.check_flags()
        a(f"s_cmp_eq_u32 s{sROLE}, 3")
        a("s_cbranch_scc1 L_ffn")
        a(f"s_cmp_eq_u32 s{sROLE}, 1")
        a("s_cbranch_scc1 L_fin")
        P = RING; ML = RING + 32; A = 32; Y = 16
        a("s_lshr_b32 s12, s3, 2")
        a("s_lshl_b32 s12, s12, 5")
        a(f"s_lshl_b32 s13, s{sHKV}, 2")
        a("s_add_u32 s12, s12, s13")
        a("s_and_b32 s13, s3, 3")
        a("s_add_u32 s12, s12, s13")
        a("s_lshl_b32 vcc_hi, s12, 7")
        a(f"s_add_u32 s{sJ}, vcc_hi, {WS_AM:#x}")
        a("s_lshl_b32 s13, s12, 13")
        a(f"s_add_u32 s13, s13, {WS_AO:#x}")
        a("v_lshl_add_u32 v4, v2, 2, v3")
        a("v_and_b32 v4, 15, v4")
        a("v_lshlrev_b32 v4, 3, v4")
        a("v_lshlrev_b32 v7, 11, v2")
        a("v_lshl_add_u32 v7, v3, 4, v7")
        self.barrier()
        self.prepoll(ML, 2, 4, f"s{sJ}", 8, 16)
        groups = [[(P + 8 * i, 4, 7, "s13", 512 * i), (P + 8 * i + 4, 4, 7, "s13", 512 * i + 256)] for i in range(4)]
        groups.append([(ML, 2, 4, f"s{sJ}", 0)])
        (self.poll2 if self.p2 else self.poll)(groups, 8)
        self.stamp(4)
        a(f"v_mov_b32 v50, v{ML}")
        reduce_row16_add(a, 50, "max")
        a(f"v_sub_f32 v50, v{ML}, v50")
        a("v_exp_f32 v50, v50")
        a("s_nop 0")
        a(f"v_mul_f32 v51, v50, v{ML+1}")
        reduce_row16_add(a, 51)
        a("v_rcp_f32 v52, v51")
        a("s_nop 0")
        a("v_fma_f32 v53, -v51, v52, 1.0")
        a("v_fmac_f32 v52, v53, v52")
        a("v_mul_f32 v50, v50, v52")
        a("v_lshrrev_b32 v4, 1, v2")
        a("v_lshlrev_b32 v4, 7, v4")
        for r in range(8):
            a(f"v_mul_f32_dpp v{A+r}, v50, v{P+r} row_newbcast:0 row_mask:0xf bank_mask:0xf")
        for i in range(1, 4):
            for r in range(8):
                a(f"v_fmac_f32_dpp v{A+r}, v50, v{P+8*i+r} row_newbcast:{i} row_mask:0xf bank_mask:0xf")
        a("v_lshl_add_u32 v4, v3, 3, v4")
        a("v_and_b32 v7, 1, v2")
        for r in range(4):
            a(f"v_permlane32_swap_b32 v{A+r}, v{A+4+r}")
        for r in range(4):
            a(f"v_add_f32 v{A+r}, v{A+r}, v{A+4+r}")
        a("v_lshl_add_u32 v4, v7, 2, v4")
        a("s_lshl_b32 s13, s3, 8")
        for r in range(2):
            a(f"v_permlane16_swap_b32 v{A+r}, v{A+2+r}")
        for r in range(2):
            a(f"v_add_f32 v{A+r}, v{A+r}, v{A+2+r}")
        a("v_add_u32 v4, s13, v4")
        a(f"v_cvt_pk_bf16_f32 v{A}, v{A}, v{A+1}")
        a(f"ds_write_b32 v4, v{A} offset:{LX}")
        a("v_lshrrev_b32 v4, 3, v3")
        a("v_lshlrev_b32 v4, 10, v4")
        a("v_lshl_add_u32 v4, v2, 5, v4")
        a("s_lshl_b32 s13, s3, 7")
        a("v_add_u32 v4, s13, v4")
        a("s_waitcnt lgkmcnt(0)")
        self.barrier()
        a(f"ds_read_b128 {vr(Y,4)}, v4 offset:{LX}")
        a(f"ds_read_b128 {vr(Y+4,4)}, v4 offset:{LX+16}")
        a("s_waitcnt lgkmcnt(0)")
        gemv_mfma(a, Y, 16, W, SEL, 52, 56, 60)
        self.xwave_reduce(60, 8, "L_done")
        for r in range(4):
            a(f"v_min_u32 v{8+r}, -2, v{8+r}")
        self.c_addr(4, 11)
        a(f"s_lshl_b32 s13, s{sHKV}, 12")
        a(f"s_lshl_b32 s12, s{sIDX}, 9")
        a("s_add_u32 s13, s13, s12")
        a(f"s_add_u32 s13, s13, {WS_WP:#x}")
        self.store(8, 4, 4, "s13")
        a("s_branch L_done")
        a.label("L_ffn")
        P = RING; X = 8; Y = 16; F = 32
        a("v_lshlrev_b32 v4, 3, v0")
        a("v_lshlrev_b32 v7, 2, v0")
        l = a.newlabel("L_nx")
        self.skip_if_dry(l)
        a(f"buffer_load_dword v{P+16}, v7, {sr(RX,4)}, 0 offen ;POLL")
        a.label(l)
        a(f"s_mov_b32 s13, {WS_WP:#x}")
        a(f"s_mov_b32 s{sJ}, {WS_WP+0x4000:#x}")
        self.barrier()
        a(f"s_and_b32 s12, s{sIDX}, 7")
        a("s_lshl_b32 s12, s12, 12")
        a("v_mov_b32 v8, s12")
        self.prepoll(P, 1, 8, "s13", 9, 0)
        a("v_add_u32 v69, 0x1000, v4")
        a("v_add_u32 v70, 0x2000, v4")
        a("v_add_u32 v71, 0x3000, v4")
        av = [4, 69, 70, 71]
        groups = [[(P + 2 * k, 2, av[k % 4], "s13" if k < 4 else f"s{sJ}", 0) for k in (2 * i, 2 * i + 1)] for i in range(4)]
        (self.poll2 if self.p2 else self.poll)(groups, 8)
        self.stamp(4)
        a(f"v_add_f32 v8, v{P}, v{P+2}")
        a(f"v_add_f32 v9, v{P+1}, v{P+3}")
        for k in range(2, 8):
            a(f"v_add_f32 v8, v8, v{P+2*k}")
            a(f"v_add_f32 v9, v9, v{P+2*k+1}")
        a("v_cvt_pk_bf16_f32 v8, 0, v8")
        a("v_cvt_pk_bf16_f32 v9, 0, v9")
        a(f"v_lshlrev_b32 v10, 16, v{P+16}")
        a(f"v_and_b32 v11, 0xffff0000, v{P+16}")
        if not self.newln:
            a("v_add_f32 v8, v8, v10")
            a("v_add_f32 v9, v9, v11")
            a("v_cvt_pk_bf16_f32 v8, v8, v9")
            a(f"ds_write_b32 v7, v8 offset:{LX}")
            a(f"v_lshlrev_b32 v7, 5, v{vLane}")
            a("v_lshrrev_b32 v4, 3, v3")
            a("v_lshlrev_b32 v4, 10, v4")
            a("v_lshl_add_u32 v4, v2, 5, v4")
            a("s_lshl_b32 s13, s3, 7")
            a("v_add_u32 v4, s13, v4")
            a("s_waitcnt lgkmcnt(0)")
            self.barrier()
            a(f"ds_read_b128 {vr(X,4)}, v7 offset:{LX}")
            a(f"ds_read_b128 {vr(X+4,4)}, v7 offset:{LX+16}")
            a(f"ds_read_b128 {vr(Y,4)}, v4 offset:{LX}")
            a(f"ds_read_b128 {vr(Y+4,4)}, v4 offset:{LX+16}")
            a("s_waitcnt lgkmcnt(2)")
            ln_stats(a, X, F, 50, 51, 48, 49, 6)
            a("s_waitcnt lgkmcnt(0)")
            ln_apply(a, Y, 8, 50, 51, 48, 49)
        else:
            LS = LA + 256
            a("v_add_f32 v8, v8, v10")
            a("v_add_f32 v9, v9, v11")
            a("v_cvt_pk_bf16_f32 v10, 0, v8")
            a("v_cvt_pk_bf16_f32 v11, 0, v9")
            a("v_cvt_pk_bf16_f32 v8, v8, v9")
            a("v_readfirstlane_b32 s12, v10")
            a(f"ds_write_b32 v7, v8 offset:{LX}")
            a("v_lshrrev_b32 v4, 3, v3")
            a("v_subrev_f32 v10, s12, v10")
            a("v_subrev_f32 v11, s12, v11")
            a("v_add_f32 v12, v10, v11")
            a("v_mul_f32 v13, v10, v10")
            a("v_fmac_f32 v13, v11, v11")
            a("v_lshlrev_b32 v7, 5, v4")
            for ctl in ("quad_perm:[1,0,3,2]", "quad_perm:[2,3,0,1]", "row_half_mirror", "row_mirror"):
                a(f"v_add_f32_dpp v12, v12, v12 {ctl} row_mask:0xf bank_mask:0xf")
                a("s_nop 0")
                a(f"v_add_f32_dpp v13, v13, v13 {ctl} row_mask:0xf bank_mask:0xf")
                if ctl != "row_mirror": a("s_nop 0")
            for op in ("v_permlane16_swap_b32", "v_permlane32_swap_b32"):
                a("v_mov_b32 v14, v12")
                a("v_mov_b32 v15, v13")
                a("s_nop 0")
                a(f"{op} v12, v14")
                a(f"{op} v13, v15")
                a("v_add_f32 v12, v12, v14")
                a("v_add_f32 v13, v13, v15")
            a("v_lshlrev_b32 v4, 10, v4")
            a("v_mul_f32 v14, 0x3c000000, v12")
            a("v_lshl_add_u32 v4, v2, 5, v4")
            a("v_fma_f32 v13, -v14, v12, v13")
            a("v_add_f32 v12, s12, v14")
            a("s_lshl_b32 s13, s3, 3")
            a("v_mov_b32 v14, s13")
            a(f"ds_write_b64 v14, v[12:13] offset:{LS}")
            a("s_lshl_b32 s13, s3, 7")
            a("v_add_u32 v4, s13, v4")
            a("s_waitcnt lgkmcnt(0)")
            self.barrier()
            a(f"ds_read_b128 v[8:11], v7 offset:{LS}")
            a(f"ds_read_b128 v[12:15], v7 offset:{LS+16}")
            a(f"ds_read_b128 {vr(Y,4)}, v4 offset:{LX}")
            a(f"ds_read_b128 {vr(Y+4,4)}, v4 offset:{LX+16}")
            a("s_waitcnt lgkmcnt(2)")
            a("v_add_f32 v50, v8, v10")
            a("v_add_f32 v51, v12, v14")
            a("v_add_f32 v9, v9, v11")
            a("v_add_f32 v50, v50, v51")
            a("v_add_f32 v13, v13, v15")
            a("v_mul_f32 v50, 0.25, v50" if False else "v_mul_f32 v50, 0x3e800000, v50")
            a("v_add_f32 v9, v9, v13")
            for r in (8, 10, 12, 14):
                a(f"v_sub_f32 v{r}, v{r}, v50")
            a("v_mul_f32 v51, v8, v8")
            for r in (10, 12, 14):
                a(f"v_fmac_f32 v51, v{r}, v{r}")
            a("v_mul_f32 v9, 0x3b000000, v9")
            a("v_fmac_f32 v9, 0x3e800000, v51" if False else "v_fmamk_f32 v51, v51, 0x3e800000, v9")
            a("v_cvt_pk_bf16_f32 v50, 0, v50")
            a("v_cvt_pk_bf16_f32 v51, 0, v51")
            a(f"v_add_f32 v51, {EPS:#x}, v51")
            a("v_cvt_pk_bf16_f32 v51, 0, v51")
            a("v_sqrt_f32 v51, v51")
            a("s_nop 0")
            a("v_cvt_pk_bf16_f32 v51, 0, v51")
            a("v_rcp_f32 v51, v51")
            a("s_waitcnt lgkmcnt(0)")
            for j in range(8):
                t = 32 + 2 * (j % 4)
                a(f"v_lshlrev_b32 v{t}, 16, v{Y+j}")
                a(f"v_and_b32 v{t+1}, 0xffff0000, v{Y+j}")
                a(f"v_pk_add_f32 v[{t}:{t+1}], v[{t}:{t+1}], v[50:51] op_sel_hi:[1,0] neg_lo:[0,1] neg_hi:[0,1]")
                a(f"v_cvt_pk_bf16_f32 v{t}, 0, v{t}")
                a(f"v_cvt_pk_bf16_f32 v{t+1}, 0, v{t+1}")
                a(f"v_pk_mul_f32 v[{t}:{t+1}], v[{t}:{t+1}], v[50:51] op_sel:[0,1] op_sel_hi:[1,1]")
                a(f"v_cvt_pk_bf16_f32 v{Y+j}, v{t}, v{t+1}")
        gemv_mfma(a, Y, 16, W, SEL, 52, 56, 60)
        a("v_lshlrev_b32 v4, 4, v0")
        a("s_nop 7")
        a(f"ds_write_b128 v4, {vr(60,4)} offset:{LR}")
        a("v_bfe_u32 v4, v0, 6, 1")
        a("v_lshlrev_b32 v4, 9, v4")
        a(f"v_bfe_u32 v7, v{vLane}, 2, 1")
        a("v_lshl_add_u32 v4, v7, 8, v4")
        a(f"v_lshrrev_b32 v7, 3, v{vLane}")
        a("v_lshl_add_u32 v4, v7, 4, v4")
        a(f"v_and_b32 v7, 3, v{vLane}")
        a("v_lshl_add_u32 v4, v7, 2, v4")
        a("s_waitcnt lgkmcnt(0)")
        self.barrier()
        self.only_waves_below(2, "L_noact")
        G = 8
        for w in range(8):
            a(f"ds_read_b32 v{G+w}, v4 offset:{LR+1024*w}")
            a(f"ds_read_b32 v{G+8+w}, v4 offset:{LR+1024*w+128}")
        a("v_and_b32 v4, 127, v0")
        a("v_lshlrev_b32 v4, 1, v4")
        a("s_waitcnt lgkmcnt(0)")
        for w in range(1, 8):
            a(f"v_add_f32 v{G}, v{G}, v{G+w}")
            a(f"v_add_f32 v{G+8}, v{G+8}, v{G+8+w}")
        a(f"v_cvt_pk_bf16_f32 v{G}, 0, v{G}")
        a(f"v_cvt_pk_bf16_f32 v{G+8}, 0, v{G+8}")
        a(f"v_mul_f32 v{G+1}, 0xbfb8aa3b, v{G}")
        a(f"v_exp_f32 v{G+1}, v{G+1}")
        a("s_nop 0")
        a(f"v_add_f32 v{G+1}, 1.0, v{G+1}")
        a(f"v_rcp_f32 v{G+2}, v{G+1}")
        a("s_nop 0")
        a(f"v_mul_f32 v{G+3}, v{G}, v{G+2}")
        a(f"v_fma_f32 v{G+4}, -v{G+3}, v{G+1}, v{G}")
        a(f"v_fmac_f32 v{G+3}, v{G+4}, v{G+2}")
        a(f"v_cvt_pk_bf16_f32 v{G+3}, 0, v{G+3}")
        a(f"v_mul_f32 v{G+3}, v{G+3}, v{G+8}")
        a(f"v_cvt_pk_bf16_f32 v{G+3}, v{G+3}, v{G+3}")
        a(f"ds_write_b16 v4, v{G+3} offset:{LA}")
        a("s_waitcnt lgkmcnt(0)")
        a.label("L_noact")
        a("v_lshrrev_b32 v4, 3, v3")
        a("v_lshlrev_b32 v4, 7, v4")
        a("v_lshl_add_u32 v4, v2, 4, v4")
        a("s_lshr_b32 s12, s3, 2")
        a("s_lshl_b32 s13, s12, 6")
        a("v_add_u32 v4, s13, v4")
        self.barrier()
        a(f"ds_read_b128 {vr(Y,4)}, v4 offset:{LA}")
        self.c_addr(4, 11)
        a(f"s_lshl_b32 s13, s{sIDX}, 13")
        a("s_lshl_b32 s12, s12, 12")
        a("s_add_u32 s13, s13, s12")
        a("s_and_b32 s12, s3, 3")
        a("s_lshl_b32 s12, s12, 9")
        a("s_add_u32 s13, s13, s12")
        a(f"s_add_u32 s13, s13, {WS_DP:#x}")
        a("s_waitcnt lgkmcnt(0)")
        gemv_mfma(a, Y, 8, WD, SEL, 52, 56, 60)
        a("s_nop 7")
        for r in range(4):
            a(f"v_min_u32 v{60+r}, -2, v{60+r}")
        self.store(60, 4, 4, "s13")
        a("s_branch L_done")
        a.label("L_fin")
        self.only_waves_below(1, "L_done")
        P = RING; H = 8
        a(f"v_and_b32 v7, 7, v{vLane}")
        a("v_lshlrev_b32 v4, 4, v7")
        a("v_add_u32 v69, 0x1000, v4")
        a("v_add_u32 v70, 0x2000, v4")
        a("v_add_u32 v71, 0x3000, v4")
        a("v_lshlrev_b32 v7, 3, v7")
        a("s_lshl_b32 s12, s2, 6")
        l = a.newlabel("L_nx")
        self.skip_if_dry(l)
        a(f"buffer_load_dwordx2 {vr(P+60,2)}, v7, {sr(RX,4)}, s12 offen ;POLL")
        a.label(l)
        a("s_lshl_b32 s12, s2, 7")
        a(f"s_add_u32 s13, s12, {WS_WP:#x}")
        a(f"s_add_u32 s{sJ}, s12, {WS_WP+0x4000:#x}")
        groups = [[(P + 4 * k, 4, av[k % 4], "s13" if k < 4 else f"s{sJ}", 0) for k in (2 * i, 2 * i + 1)] for i in range(4)]
        self.poll(groups, 8, gate="sleep")
        for r in range(4):
            a(f"v_add_f32 v{H+r}, v{P+r}, v{P+4+r}")
        for k in range(2, 8):
            for r in range(4):
                a(f"v_add_f32 v{H+r}, v{H+r}, v{P+4*k+r}")
        for r in range(4):
            a(f"v_cvt_pk_bf16_f32 v{H+r}, 0, v{H+r}")
        a(f"v_lshlrev_b32 v12, 16, v{P+60}")
        a(f"v_and_b32 v13, 0xffff0000, v{P+60}")
        a(f"v_lshlrev_b32 v14, 16, v{P+61}")
        a(f"v_and_b32 v15, 0xffff0000, v{P+61}")
        for r in range(4):
            a(f"v_add_f32 v{H+r}, v{H+r}, v{12+r}")
        for r in range(4):
            a(f"v_cvt_pk_bf16_f32 v{H+r}, 0, v{H+r}")
        a(f"v_lshrrev_b32 v16, 3, v{vLane}")
        a("v_lshl_add_u32 v4, v16, 12, v4")
        for k in range(1, 4):
            a(f"v_add_u32 v{68+k}, {0x8000*k:#x}, v4")
        a("s_lshl_b32 s12, s2, 7")
        a(f"s_add_u32 s13, s12, {WS_DP:#x}")
        a(f"s_add_u32 s{sJ}, s13, 0x20000")
        groups = [[(P + 4 * k, 4, av[k % 4], "s13" if k < 4 else f"s{sJ}", 0) for k in range(2 * i, min(2 * i + 2, 7))] for i in range(4)]
        (self.poll2 if self.p2 else self.poll)(groups, 16)
        self.stamp(4)
        T = 12
        for r in range(4):
            a(f"v_add_f32 v{T+r}, v{P+r}, v{P+4+r}")
        for k in range(2, 7):
            for r in range(4):
                a(f"v_add_f32 v{T+r}, v{T+r}, v{P+4*k+r}")
        a("s_nop 1")
        for r in range(4):
            a(f"v_add_f32_dpp v{T+r}, v{T+r}, v{T+r} row_ror:8 row_mask:0xf bank_mask:0xf")
        for r in range(4):
            a(f"v_mov_b32 v{T+4+r}, v{T+r}")
        a("s_nop 0")
        for r in range(4):
            a(f"v_permlane16_swap_b32 v{T+r}, v{T+4+r}")
        for r in range(4):
            a(f"v_add_f32 v{T+r}, v{T+r}, v{T+4+r}")
        for r in range(4):
            a(f"v_mov_b32 v{T+4+r}, v{T+r}")
        a("s_nop 0")
        for r in range(4):
            a(f"v_permlane32_swap_b32 v{T+r}, v{T+4+r}")
        for r in range(4):
            a(f"v_add_f32 v{T+r}, v{T+r}, v{T+4+r}")
        for r in range(4):
            a(f"v_cvt_pk_bf16_f32 v{T+r}, 0, v{T+r}")
        for r in range(4):
            a(f"v_add_f32 v{H+r}, v{H+r}, v{T+r}")
        if self.pert:
            import struct
            el, dv = self.pert.split(":")
            bits = struct.unpack("<I", struct.pack("<f", float(dv)))[0]
            a("s_cmp_lg_u32 s2, 0")
            a("s_cbranch_scc1 L_nopert")
            a("s_mov_b64 exec, 1")
            a(f"v_add_f32 v{H+int(el)}, {bits:#x}, v{H+int(el)}")
            a("s_mov_b64 exec, -1")
            a.label("L_nopert")
        a(f"v_cvt_pk_bf16_f32 v{H}, v{H}, v{H+1}")
        a(f"v_cvt_pk_bf16_f32 v{H+1}, v{H+2}, v{H+3}")
        a("s_lshl_b32 s12, s2, 6")
        a("s_mov_b64 exec, 0xff")
        self.store(H, 2, 7, "s12", srd=ROUT, flags="")
        a("s_cmp_lg_u32 s2, 0")
        a("s_cbranch_scc1 L_noep")
        a(f"v_mov_b32 v8, s{sTAG}")
        a("v_mov_b32 v4, 0")
        a("s_mov_b64 exec, 1")
        self.store(8, 1, 4, "0", imm=WS_EPOCH, flags="")
        a.label("L_noep")
        a("s_mov_b64 exec, -1")
        a.label("L_done")
        a.raw(";TAIL_END")
        if self.dry:
            a(f"s_cmp_eq_u32 s{sDRY}, 1")
            a("s_cbranch_scc1 L_dryend")
        if self.stamps:
            self.stamp(5)
            a("s_getreg_b32 s12, hwreg(HW_REG_XCC_ID)")
            a("s_waitcnt lgkmcnt(0)")
            a(f"v_mov_b32 v8, s{sST+12}")
            a(f"v_mov_b32 v9, s{sST+2}")
            a(f"v_mov_b32 v10, s{sST+4}")
            a(f"v_mov_b32 v11, s{sST+8}")
            a("v_mov_b32 v4, 0")
            a("s_lshl_b32 s13, s2, 3")
            a("s_add_u32 s13, s13, s3")
            a("s_lshl_b32 s13, s13, 4")
            a(f"s_add_u32 s13, s13, {STAMP+0x8000:#x}")
            a("s_mov_b64 exec, 1")
            a(f"buffer_store_dwordx4 v[8:11], v4, {sr(RWS,4)}, s13 offen")
            a("s_mov_b64 exec, -1")
            a("s_cmp_lg_u32 s3, 1")
            a("s_cbranch_scc1 L_st0")
            a(f"v_mov_b32 v8, s{sST+12}")
            a(f"v_mov_b32 v9, s{sST+4}")
            a("v_mov_b32 v4, 0")
            a("s_lshl_b32 s13, s2, 3")
            a(f"s_add_u32 s13, s13, {STAMP+0x4000:#x}")
            a("s_mov_b64 exec, 1")
            a(f"buffer_store_dwordx2 v[8:9], v4, {sr(RWS,4)}, s13 offen")
            a.label("L_st0")
            a("s_cmp_lg_u32 s3, 0")
            a("s_cbranch_scc1 L_exit")
            for k in range(6):
                a(f"v_mov_b32 v{8+k}, s{sST+2*k}")
            a("v_mov_b32 v14, s12")
            a(f"v_mov_b32 v15, s{sROLE}")
            a("v_mov_b32 v4, 0")
            a("s_lshl_b32 s13, s2, 5")
            a(f"s_add_u32 s13, s13, {STAMP:#x}")
            a("s_mov_b64 exec, 1")
            a(f"buffer_store_dwordx4 v[8:11], v4, {sr(RWS,4)}, s13 offen")
            a(f"buffer_store_dwordx4 v[12:15], v4, {sr(RWS,4)}, s13 offen offset:16")
        if self.dbgst:
            make_srd(a, RW1, P_DBG, 256)
            a("s_mov_b64 exec, 1")
            for wg, base, ks in ((0, 0, (0, 1, 2, 3, 4, 5)), (40, 6, (3, 4, 5)), (70, 9, (3, 4, 5)), (200, 12, (0, 1, 2, 3))):
                l = a.newlabel("L_dg")
                a(f"s_cmp_lg_u32 s2, {wg}")
                a(f"s_cbranch_scc1 {l}")
                for i, k in enumerate(ks):
                    a(f"v_mov_b32 v8, s{sST+2*k}")
                    a(f"v_mov_b32 v4, {4*(base+i)}")
                    a(f"buffer_store_dword v8, v4, {sr(RW1,4)}, 0 offen")
                    a("s_nop 1")
                a.label(l)
        a.label("L_exit")
        a("s_endpgm")
        pass
        out = HEADER + f"; @launch grid=(256,1,1) block=(512,1,1) lds={LDS_BYTES}\n"
        out += '.amdgcn_target "amdgcn-amd-amdhsa--gfx950"\n.text\n' + a.text()
        out += '.section .rodata,"a"\n' + kernel_desc(name, NVGPR)
        return out

    def check_tail(self):
        on = False
        for ln in self.a.lines:
            if ln.startswith(";TAIL_BEGIN"): on = True; continue
            if ln.startswith(";TAIL_END"): on = False; continue
            if not on or ";POLL" in ln: continue
            s = ln.strip()
            m = re.match(r"(v_\w+|ds_read\w+|buffer_load\w+)\s+(v\[(\d+):(\d+)\]|v(\d+))", s)
            if not m or s.startswith("v_cmp"): continue
            regs = [int(m.group(5))] if m.group(5) else list(range(int(m.group(3)), int(m.group(4)) + 1))
            if "swap" in s:
                regs.append(int(re.findall(r"v(\d+)", s.split(",")[1])[0]))
            for r in regs:
                assert r in (4, 7) or 8 <= r <= 71, f"tail writes v{r}: {s}"

if __name__ == "__main__":
    import argparse
    ap = argparse.ArgumentParser()
    ap.add_argument("-o", default="fused.s")
    ap.add_argument("--stamps", action="store_true")
    ap.add_argument("--nodry", action="store_true")
    ap.add_argument("--pace", action="store_true")
    ap.add_argument("--qfirst", type=int, default=2)
    ap.add_argument("--ne", type=int, default=3)
    ap.add_argument("--pd", type=int, default=1)
    ap.add_argument("--notail", action="store_true")
    ap.add_argument("--noq", action="store_true")
    ap.add_argument("--qbar", action="store_true")
    ap.add_argument("--prog", action="store_true")
    ap.add_argument("--nopoll", action="store_true")
    ap.add_argument("--noprod", action="store_true")
    ap.add_argument("--noclean", action="store_true")
    ap.add_argument("--qsleep", type=int, default=0)
    ap.add_argument("--pool", type=int, default=256)
    ap.add_argument("--look", type=int, default=8)
    ap.add_argument("--chunk", type=int, default=4)
    ap.add_argument("--notr", action="store_true")
    ap.add_argument("--rot", type=int, default=0)
    ap.add_argument("--pert", default=None)
    ap.add_argument("--dbgst", action="store_true")
    ap.add_argument("--park", type=int, default=4)
    ap.add_argument("--olddraw", type=int, default=0)
    ap.add_argument("--lazye", action="store_true")
    ap.add_argument("--noe_old", action="store_true")
    ap.add_argument("--sprio", type=int, default=0)
    ap.add_argument("--frag", type=int, default=4)
    ap.add_argument("--p2", action="store_true")
    ap.add_argument("--oldln", action="store_true")
    ap.add_argument("--pslp", type=int, default=4)
    ap.add_argument("--quiet", action="store_true")
    ap.add_argument("--dwo", type=int, default=16)
    ap.add_argument("--dffn", type=int, default=24)
    x = ap.parse_args()
    open(x.o, "w").write(Gen(stamps=x.stamps, dry=False, pace=x.pace, qfirst=x.qfirst, ne=x.ne, pd=x.pd, notail=x.notail, noq=x.noq, qbar=x.qbar, prog=x.prog, nopoll=x.nopoll, noprod=x.noprod, noclean=x.noclean, qsleep=x.qsleep, pool=x.pool, look=x.look, chunk=x.chunk, rot=x.rot, pert=x.pert, dbgst=x.dbgst, park=x.park, olddraw=x.olddraw, lazye=x.lazye, sprio=x.sprio, noe_old=x.noe_old, frag=x.frag, p2=x.p2, pslp=x.pslp, newln=not x.oldln, quiet=x.quiet, transpose=not x.notr, dwo=x.dwo, dffn=x.dffn).gen())
```

```python
import sys, re
from gen_common import *

WS_EPOCH = 0x0
WS_FLAG = 0x1000
WS_QP = 0x100000
WS_POOL = 0x18000
WS_QG = 0x2000
WS_AM = 0xA000
WS_WP = 0xC000
WS_DP = 0x20000
WS_AO = 0x80000
WS_END = 0x180000
STAMP = 0x200000
TAGK = 0x9E3779B9

sWG, sWV, sL2E, sSC, sMK = 2, 3, 4, 5, 6
sHKV, sB, sS, sJ = 8, 9, 10, 11
sOF0, sOF1 = 14, 15
RK, RV, RW1, RWS, RW2, RWD, RX, ROUT = 40, 44, 48, 52, 56, 60, 64, 68
sTAG, sROLE, sDRY, sTO, sIDX = 72, 73, 74, 75, 76
sM = 78
sST = 88
sE = 16
vLane, vG, vI = 1, 2, 3
vKo, vVo = 5, 6
Q = 8; O0, O1 = 24, 28; AW = 32; S = 52; R = 56
vC, vL, vAa, vAo, vT, vU, vM0, vM1, vCn = 60, 61, 62, 63, 64, 65, 66, 67, 68
vTk, vTa, vT1 = 69, 70, 71
RING = 72
W = 136; WD = 200; SEL = 232; FL = 240
NVGPR = 248
D = 2
NW = 8
LQ = 0
LO = 1024; LC = LO + NW * 2048; LL = LC + 128
LX = 1024
LR = 3072
LA = 11264
LCNT = LL + 128
LQF = LCNT + 4
LCH = LCNT + 16
LDS_BYTES = LCH + 1024
EMPTY = 0xFFFFFFFE
INVALID = 0x40000000
sSLAB, sT0, sSB = 22, 23, 24
vPF = 244
vRQ = 245
sPD = 30


class Gen:
    def __init__(self, stamps=False, dry=True, pol="nt", pace=False, dwo=16, dffn=24, qfirst=2, ne=3, pd=1, notail=False, noq=False, qbar=False, prog=False, nopoll=False, noprod=False, noclean=False, qsleep=0, pool=256, look=8, transpose=True, chunk=4, rot=0, pert=None, dbgst=False, park=4, olddraw=0, lazye=False, sprio=0, noe_old=False, frag=4, p2=True, pslp=4, newln=True, quiet=False, latew=True, rolepool=1, wlead_wo=8, wlead_ffn=-100):
        self.a = Asm(); self.stamps = stamps; self.dry = dry; self.pol = pol; self.pace = pace
        self.dwo = dwo; self.dffn = dffn; self.qfirst = qfirst; self.ne = ne; self.pd = pd; self.notail = notail; self.noq = noq; self.qbar = qbar; self.prog = prog; self.nopoll = nopoll; self.noprod = noprod; self.noclean = noclean; self.qsleep = qsleep; self.pool = pool; self.look = look; self.transpose = transpose; self.chunk = chunk; self.rot = rot; self.pert = pert; self.dbgst = dbgst; self.park = park; self.olddraw = olddraw; self.lazye = lazye; self.sprio = sprio; self.noe_old = noe_old; self.frag = frag; self.p2 = p2; self.pslp = pslp; self.newln = newln; self.quiet = quiet; self.latew = latew; self.rolepool = rolepool; self.wlead_wo = wlead_wo; self.wlead_ffn = wlead_ffn; self.cshift = 12 + chunk.bit_length() - 1
        self.nst = 0

    def stamp(self, k):
        if self.stamps:
            self.a(f"s_memrealtime s[{sST+2*k}:{sST+2*k+1}]")

    def skip_if_dry(self, lab):
        if self.dry:
            self.a(f"s_cmp_eq_u32 s{sDRY}, 1")
            self.a(f"s_cbranch_scc1 {lab}")

    def barrier(self):
        a = self.a
        if self.dry:
            l = a.newlabel("L_nb")
            self.skip_if_dry(l)
            a("s_barrier")
            a.label(l)
        else:
            a("s_barrier")

    def only_waves_below(self, n, lab):
        a = self.a
        if self.dry:
            a(f"s_cmp_ge_u32 s{sIDX+1}, {n}")
        else:
            a(f"s_cmp_ge_u32 s{sWV}, {n}")
        a(f"s_cbranch_scc1 {lab}")

    def store(self, data, n, voff, soff, srd=RWS, imm=0, flags="sc1"):
        a = self.a
        op = {1: "dword", 2: "dwordx2", 4: "dwordx4"}[n]
        d = f"v{data}" if n == 1 else vr(data, n)
        l = None
        if self.dry:
            l = a.newlabel("L_ns"); self.skip_if_dry(l)
        a(f"buffer_store_{op} {d}, v{voff}, {sr(srd,4)}, {soff} offen offset:{imm} {flags}")
        if l: a.label(l)

    def poll(self, groups, tmp, bad="-1", words=None, gate=None, tail=True):
        a = self.a
        done = a.newlabel("L_pdone"); top = a.newlabel("L_poll")
        if tail: self.skip_if_dry(done)
        for k in range(len(groups)):
            a(f"s_mov_b64 s[{sM+2*k}:{sM+2*k+1}], -1")
        a.label(top)
        for k, grp in enumerate(groups):
            sk = a.newlabel("L_psk")
            a(f"s_mov_b64 exec, s[{sM+2*k}:{sM+2*k+1}]")
            a(f"s_cbranch_execz {sk}")
            for (dst, n, voff, soff, imm) in grp:
                op = {1: "dword", 2: "dwordx2", 4: "dwordx4"}[n]
                d = f"v{dst}" if n == 1 else vr(dst, n)
                a(f"buffer_load_{op} {d}, v{voff}, {sr(RWS,4)}, {soff} offen offset:{imm} sc1 ;POLL")
            a.label(sk)
        a("s_mov_b64 exec, -1")
        a("s_waitcnt vmcnt(0)")
        for k, grp in enumerate(groups):
            if words is None:
                ws = [dst + i for (dst, n, _, _, _) in grp for i in range(n)]
                a(f"v_max_u32 v{tmp}, v{ws[0]}, v{ws[1]}")
                i = 2
                while i < len(ws):
                    if i + 1 < len(ws):
                        a(f"v_max3_u32 v{tmp}, v{tmp}, v{ws[i]}, v{ws[i+1]}"); i += 2
                    else:
                        a(f"v_max_u32 v{tmp}, v{tmp}, v{ws[i]}"); i += 1
                a(f"v_cmp_eq_u32 s[{sM+2*k}:{sM+2*k+1}], -1, v{tmp}")
            else:
                ws = words[k]
                a(f"v_xor_b32 v{tmp}, s{sTAG}, v{ws[0]}")
                for w in ws[1:]:
                    a(f"v_xor_b32 v{tmp+1}, s{sTAG}, v{w}")
                    a(f"v_or_b32 v{tmp}, v{tmp}, v{tmp+1}")
                a(f"v_cmp_ne_u32 s[{sM+2*k}:{sM+2*k+1}], 0, v{tmp}")
        a("s_nop 0")
        a(f"s_mov_b64 vcc, s[{sM}:{sM+1}]")
        for k in range(1, len(groups)):
            a(f"s_or_b64 vcc, vcc, s[{sM+2*k}:{sM+2*k+1}]")
        a(f"s_cmp_eq_u64 vcc, 0")
        a(f"s_cbranch_scc1 {done}")
        a(f"s_sub_u32 s{sTO}, s{sTO}, 1")
        a(f"s_cbranch_scc1 L_exit")
        if gate == "sleep":
            a("s_sleep 8")
        elif not tail and self.qsleep:
            a(f"s_sleep {self.qsleep}")
        a(f"s_branch {top}")
        a.label(done)

    def poll2(self, groups, tmp):
        a = self.a
        done = a.newlabel("L_pdone"); top = a.newlabel("L_poll")
        n = sum(len(g) for g in groups)
        def issue(first):
            for k, grp in enumerate(groups):
                if not first:
                    a(f"s_or_b64 exec, s[{sM+2*k}:{sM+2*k+1}], 1")
                for (dst, nd, voff, soff, imm) in grp:
                    op = {1: "dword", 2: "dwordx2", 4: "dwordx4"}[nd]
                    d = f"v{dst}" if nd == 1 else vr(dst, nd)
                    a(f"buffer_load_{op} {d}, v{voff}, {sr(RWS,4)}, {soff} offen offset:{imm} sc1")
            if not first: a("s_mov_b64 exec, -1")
        issue(True)
        for k in range(len(groups)):
            a(f"s_mov_b64 s[{sM+2*k}:{sM+2*k+1}], -1")
        a(f"s_sleep {self.pslp}")
        a.label(top)
        issue(False)
        a(f"s_waitcnt vmcnt({n})")
        for k, grp in enumerate(groups):
            ws = [dst + i for (dst, nd, _, _, _) in grp for i in range(nd)]
            a(f"v_max_u32 v{tmp}, v{ws[0]}, v{ws[1]}")
            i = 2
            while i < len(ws):
                if i + 1 < len(ws):
                    a(f"v_max3_u32 v{tmp}, v{tmp}, v{ws[i]}, v{ws[i+1]}"); i += 2
                else:
                    a(f"v_max_u32 v{tmp}, v{tmp}, v{ws[i]}"); i += 1
            a(f"v_cmp_eq_u32 s[{sM+2*k}:{sM+2*k+1}], -1, v{tmp}")
        a(f"s_sub_u32 s{sTO}, s{sTO}, 1")
        a(f"s_cbranch_scc1 L_exit")
        a(f"s_or_b64 vcc, s[{sM}:{sM+1}], s[{sM+2}:{sM+3}]")
        for k in range(2, len(groups)):
            a(f"s_or_b64 vcc, vcc, s[{sM+2*k}:{sM+2*k+1}]")
        a(f"s_cbranch_scc1 {top}")

    def prepoll(self, dst, n, voff, soff, tmp, maxbad):
        a = self.a
        done = a.newlabel("L_gdone"); top = a.newlabel("L_gate")
        self.skip_if_dry(done)
        a.label(top)
        op = {1: "dword", 2: "dwordx2", 4: "dwordx4"}[n]
        d = f"v{dst}" if n == 1 else vr(dst, n)
        a(f"buffer_load_{op} {d}, v{voff}, {sr(RWS,4)}, {soff} offen sc1 ;POLL")
        a("s_waitcnt vmcnt(0)")
        a(f"v_cmp_eq_u32 vcc, -1, v{dst}")
        a("s_nop 0")
        a(f"s_bcnt1_i32_b64 s12, vcc")
        a(f"s_cmp_le_u32 s12, {maxbad}")
        a(f"s_cbranch_scc1 {done}")
        a(f"s_sub_u32 s{sTO}, s{sTO}, 1")
        a(f"s_cbranch_scc1 L_exit")
        a("s_sleep 8")
        a(f"s_branch {top}")
        a.label(done)

    def check_flags(self):
        a = self.a
        ok = a.newlabel("L_flok")
        self.skip_if_dry(ok)
        a(f"v_xor_b32 v8, s{sTAG}, v{FL}")
        for i in range(1, 4):
            a(f"v_xor_b32 v9, s{sTAG}, v{FL+i}")
            a(f"v_or_b32 v8, v8, v9")
        a("v_cmp_ne_u32 vcc, 0, v8")
        a("s_nop 0")
        a("s_cmp_eq_u64 vcc, 0")
        a(f"s_cbranch_scc1 {ok}")
        a(f"v_lshlrev_b32 v4, 4, v{vLane}")
        a(f"s_mov_b32 s13, {WS_FLAG:#x}")
        self.poll([[(FL, 4, 4, "s13", 0)]], 8, words=[[FL, FL + 1, FL + 2, FL + 3]], gate="sleep")
        a.label(ok)

    def ldK(self, slot):
        so = sOF0 + slot if slot < 2 else sE + slot - 2
        for j in range(4):
            self.a(f"buffer_load_dwordx4 {vr(RING+32*slot+4*j,4)}, v{vKo}, {sr(RK,4)}, s{so} offen offset:{j*64} {self.pol}")
    def ldV(self, slot):
        so = sOF0 + slot if slot < 2 else sE + slot - 2
        for t in range(4):
            self.a(f"buffer_load_dwordx4 {vr(RING+32*slot+16+4*t,4)}, v{vVo}, {sr(RV,4)}, s{so} offen offset:{t*1024} {self.pol}")

    def unit(self, d):
        a = self.a
        K = RING + 32 * d; V = K + 16
        ring = d < 2
        if ring:
            a(f"s_cmp_ge_u32 s{sOF0+d}, s{RK+2}")
            a("s_cbranch_scc1 L_epi")
            a("s_mov_b64 exec, 1")
            a(f"ds_add_rtn_u32 v{vTk}, v{vTa}, v{vT1}")
            a("s_mov_b64 exec, -1")
            a(f"s_waitcnt vmcnt({8*D-4})")
        else:
            a(f"s_cmp_ge_u32 s{sE+d-2}, s{RK+2}")
            a("s_cbranch_scc1 L_loop")
        for j in range(4):
            c = "0" if j == 0 else vr(S, 4)
            a(f"v_mfma_f32_16x16x32_bf16 {vr(S,4)}, {vr(K+4*j,4)}, {vr(Q+4*j,4)}, {c}")
            if j == 1 and ring:
                a("s_waitcnt lgkmcnt(0)")
                a(f"v_readfirstlane_b32 s{sOF0+d}, v{vTk}")
        if ring:
            a(f"s_cmp_ge_u32 s{sOF0+d}, s{sT0}")
            a(f"s_cbranch_scc1 L_slow{d}")
            a(f"s_add_u32 s{sOF0+d}, s{sOF0+d}, s{sSLAB}")
            a(f"s_and_b32 s{sOF0+d}, s{sOF0+d}, 0x7fffff")
            if self.park < 8: a(f"s_or_b32 s{sOF0+d}, s{sOF0+d}, s29")
            a.label(f"L_back{d}")
            self.ldK(d)
            a("s_nop 0")
        else:
            a("s_nop 7")
        for r in range(4):
            a(f"v_cvt_pk_bf16_f32 v{R+r}, 0, v{S+r}")
        for r in range(4):
            a(f"v_mul_f32 v{R+r}, s{sSC}, v{R+r}")
        for r in range(4):
            a(f"v_cvt_pk_bf16_f32 v{R+r}, 0, v{R+r}")
        a(f"v_max3_f32 v{vT}, v{R}, v{R+1}, v{R+2}")
        a(f"v_max_f32 v{vT}, v{vT}, v{R+3}")
        xhalf32(a, vT, vU, "max")
        xrow16(a, vT, vU, "max")
        a(f"v_mul_f32 v{vT}, s{sL2E}, v{vT}")
        a(f"v_max_f32 v{vCn}, v{vC}, v{vT}")
        a(f"v_sub_f32 v{vAa}, v{vC}, v{vCn}")
        a(f"v_exp_f32 v{vAa}, v{vAa}")
        for r in range(4):
            a(f"v_fma_f32 v{R+r}, v{R+r}, s{sL2E}, -v{vCn}")
        a(f"v_mov_b32 v{vC}, v{vCn}")
        for r in range(4):
            a(f"v_exp_f32 v{R+r}, v{R+r}")
        for g in range(4):
            a(f"v_mov_b32_dpp v{vAo}, v{vAa} row_newbcast:{4*g} row_mask:{1<<g:#x} bank_mask:0xf")
        a(f"v_mul_f32 v{vL}, v{vL}, v{vAa}")
        for t in range(4):
            a(f"v_cvt_pk_bf16_f32 v{vT}, v{R+t}, v{R+t}")
            a(f"v_and_b32 v{AW+4*t+2}, v{vT}, v{vM0}")
            a(f"v_and_b32 v{AW+4*t+3}, v{vT}, v{vM1}")
        for r in range(8):
            a(f"v_mul_f32 v{O0+r}, v{O0+r}, v{vAo}")
        a(f"v_add_f32 v{R}, v{R}, v{R+1}")
        a(f"v_add_f32 v{R+2}, v{R+2}, v{R+3}")
        a(f"v_add_f32 v{vL}, v{vL}, v{R}")
        a(f"v_add_f32 v{vL}, v{vL}, v{R+2}")
        if ring:
            a(f"s_waitcnt vmcnt({8*D-4})")
        for t in range(4):
            a(f"v_mfma_f32_16x16x32_bf16 {vr(O0,4)}, {vr(AW+4*t+2,4)}, {vr(V+4*t,4)}, {vr(O0,4)}")
            a(f"v_mfma_f32_16x16x32_bf16 {vr(O1,4)}, {vr(AW+4*t,4)}, {vr(V+4*t,4)}, {vr(O1,4)}")
        if ring: self.ldV(d)
        if ring: self.proghook()

    def proghook(self):
        a = self.a
        if not self.prog: return
        l = a.newlabel("L_np")
        a(f"v_readfirstlane_b32 s28, v{vTk}")
        a("s_and_b32 s12, s28, 0x7000")
        a(f"s_cbranch_scc1 {l}")
        a("s_memrealtime s[26:27]")
        a(f"s_lshr_b32 s12, s28, 13")
        a("s_lshl_b32 s13, s2, 7")
        a("s_add_u32 s13, s13, s12")
        a(f"s_add_u32 s13, s13, {STAMP+0x20000:#x}")
        a("s_waitcnt lgkmcnt(0)")
        a("v_mov_b32 v7, s26")
        a("v_mov_b32 v4, 0")
        a("s_mov_b64 exec, 1")
        a(f"buffer_store_dword v7, v4, {sr(RWS,4)}, s13 offen")
        a("s_mov_b64 exec, -1")
        a.label(l)


    def slow(self, t, back):
        a = self.a
        spin = a.newlabel("L_sp")
        a(f"s_sub_u32 s{t}, s{t}, s{sSB}")
        a(f"s_lshr_b32 s12, s{t}, {self.cshift}")
        a("s_lshl_b32 s12, s12, 2")
        a("v_mov_b32 v4, s12")
        a(f"s_and_b32 s{t}, s{t}, {self.chunk*4096-1:#x}")
        a.label(spin)
        a(f"ds_read_b32 v7, v4 offset:{LCH}")
        a(f"s_sub_u32 s{sTO}, s{sTO}, 1")
        a("s_cbranch_scc1 L_exit")
        a("s_waitcnt lgkmcnt(0)")
        a("v_readfirstlane_b32 s12, v7")
        a(f"s_cmp_eq_u32 s12, {EMPTY:#x}")
        a(f"s_cbranch_scc1 {spin}")
        a(f"s_add_u32 s{t}, s{t}, s12")
        a(f"s_branch {back}")

    def agent(self):
        a = self.a
        a("s_setprio 3")
        a("s_and_b32 s13, s2, 15")
        a.label("L_agf")
        a("s_waitcnt vmcnt(0)")
        a(f"v_cmp_ne_u32 vcc, s{sTAG}, v{vPF}")
        a("s_nop 0")
        a("s_cmp_eq_u64 vcc, 0")
        a("s_cbranch_scc1 L_ag0")
        a(f"s_sub_u32 s{sTO}, s{sTO}, 1")
        a("s_cbranch_scc1 L_exit")
        a("s_lshl_b32 s12, s13, 2")
        a(f"s_add_u32 s12, s12, {WS_FLAG:#x}")
        a("v_mov_b32 v4, 0")
        a(f"buffer_load_dword v{vPF}, v4, {sr(RWS,4)}, s12 offen sc1")
        a("s_branch L_agf")
        a.label("L_ag0")
        a("s_lshl_b32 s13, s13, 8")
        a(f"s_add_u32 s13, s13, {WS_POOL:#x}")
        a(f"s_sub_u32 s16, s{sSB}, {self.look*4096}")
        a("s_mov_b32 s17, 0")
        a("s_and_b32 s12, s2, 12")
        a(f"s_mov_b32 s30, {(2*self.dwo+2*self.dffn)*4096:#x}")
        a("s_cmp_eq_u32 s12, 12")
        a(f"s_cmov_b32 s30, {(2*self.dwo+self.dffn)*4096:#x}")
        a(f"s_mov_b32 s31, {(128-self.frag)*4096:#x}")
        a("v_mov_b32 v8, 0")
        a(f"v_mov_b32 v9, {INVALID:#x}")
        a.label("L_ag1")
        a(f"ds_read_b32 v7, v{vTa}")
        a(f"s_sub_u32 s{sTO}, s{sTO}, 1")
        a("s_cbranch_scc1 L_exit")
        a("s_waitcnt lgkmcnt(0)")
        a("v_readfirstlane_b32 s12, v7")
        a("s_cmp_ge_u32 s12, s16")
        a("s_cbranch_scc1 L_ag2")
        a("s_sleep 3")
        a("s_branch L_ag1")
        a.label("L_ag2")
        if self.latew and self.rolepool < 2:
            a(f"s_cmp_ge_u32 s{sROLE}, 2" if self.rolepool == 0 else f"s_cmp_eq_u32 s{sROLE}, 2")
            a("s_cbranch_scc1 L_ag3")
        a("s_sub_u32 s12, s12, s16")
        a(f"s_lshr_b32 s12, s12, {self.cshift}")
        a("s_add_u32 s12, s12, 1")
        a("s_min_u32 s12, s12, 16")
        a(f"v_cmp_gt_u32 vcc, s12, v{vLane}")
        a(f"v_mov_b32 v7, {self.chunk*4096:#x}")
        a(f"v_add_u32 v4, s17, v{vLane}")
        a("v_lshlrev_b32 v4, 2, v4")
        a("s_mov_b64 exec, vcc")
        a(f"buffer_atomic_add v7, v8, {sr(RWS,4)}, s13 offen sc0 sc1")
        a("s_add_u32 s17, s17, s12")
        a(f"s_lshl_b32 s12, s12, {self.cshift}")
        a("s_add_u32 s16, s16, s12")
        a("s_waitcnt vmcnt(0)")
        F_ = self.frag; U = 4096
        a("v_subrev_u32 v10, s30, v7")
        a(f"v_lshrrev_b32 v11, {12+F_.bit_length()-1}, v10")
        a("v_lshlrev_b32 v11, 19, v11")
        a(f"v_and_b32 v10, {F_*U-1:#x}, v10")
        a(f"v_add3_u32 v10, v10, v11, s31")
        segs = [(0, 2, self.dwo), (self.dwo, 3, self.dwo), (2 * self.dwo, 4, self.dffn), (2 * self.dwo + self.dffn, 5, self.dffn)]
        a(f"v_add_u32 v11, {((segs[0][1]+1)*128-F_-segs[0][2]-segs[0][0])*U:#x}, v7")
        for st, sg, d in segs[1:]:
            if self.dwo + self.dffn == 0: break
            a(f"v_cmp_le_u32 vcc, {st*U:#x}, v7")
            a(f"v_add_u32 v12, {((sg+1)*128-F_-d-st)*U:#x}, v7")
            a("s_nop 0")
            a("v_cndmask_b32 v11, v11, v12, vcc")
        a("v_cmp_le_u32 vcc, s30, v7")
        a(f"s_add_u32 s12, s30, {16*F_*U:#x}")
        a("s_nop 0")
        a("v_cndmask_b32 v11, v11, v10, vcc")
        a("v_cmp_le_u32 vcc, s12, v7")
        a("v_add_u32 v7, s25, v11")
        a("v_and_b32 v7, 0x7fffff, v7")
        a("v_cndmask_b32 v7, v7, v9, vcc")
        a(f"ds_write_b32 v4, v7 offset:{LCH}")
        a("s_mov_b64 exec, -1")
        a("s_cmp_eq_u64 vcc, 0")
        a("s_cbranch_scc1 L_ag1")
        a.label("L_ag3")
        a(f"v_add_u32 v4, s17, v{vLane}")
        a("v_lshlrev_b32 v4, 2, v4")
        a(f"ds_write_b32 v4, v9 offset:{LCH}")
        a(f"ds_write_b32 v{vTa}, v9 offset:8")
        a("s_setprio 0")

    def weights(self, out, early):
        a = self.a
        u = a.newlabel('')
        a(f"s_cmp_lt_u32 s{sROLE}, 2")
        a(f"s_cbranch_scc1 {out}")
        a(f"s_cmp_eq_u32 s{sROLE}, 3")
        a(f"s_cbranch_scc1 L_ffn_w{u}")
        if early: make_srd(a, RW1, P_WO, 4096 * 512 * 2)
        a(f"s_lshl_b32 s13, s{sHKV}, 19")
        a("s_lshl_b32 s12, s3, 16")
        a("s_add_u32 s13, s13, s12")
        a(f"s_lshl_b32 s12, s{sIDX}, 8")
        a("s_add_u32 s13, s13, s12")
        a("v_lshlrev_b32 v4, 14, v2")
        a("v_lshl_add_u32 v4, v3, 4, v4")
        for t in range(16):
            a(f"buffer_load_dwordx4 {vr(W+4*t,4)}, v4, {sr(RW1,4)}, s13 offen offset:{(t%4)*1024} nt")
            if t % 4 == 3: a("s_add_u32 s13, s13, 4096")
        a(f"s_branch L_sels{u}")
        a.label(f"L_ffn_w{u}")
        if early: make_srd(a, RW1, P_WG, 512 * 1792 * 2)
        if early: make_srd(a, RW2, P_WU, 512 * 1792 * 2)
        if early: make_srd(a, RWD, P_WD, 1792 * 512 * 2)
        a("s_mul_i32 s13, s3, 64*3584")
        a(f"s_lshl_b32 s12, s{sIDX}, 6")
        a("s_add_u32 s13, s13, s12")
        a("s_mov_b32 s12, 16*3584")
        a("v_mul_lo_u32 v4, v2, s12")
        a("v_and_b32 v7, 3, v3")
        a("v_lshl_add_u32 v4, v7, 4, v4")
        a("s_mov_b32 s12, s13")
        a("s_mov_b32 exec_lo, 0x000f000f")
        a("s_mov_b32 exec_hi, 0x000f000f")
        for t in range(16):
            a(f"buffer_load_dwordx4 {vr(W+4*t,4)}, v4, {sr(RW1,4)}, s13 offen nt")
            a("s_add_u32 s13, s13, 3584")
        a("s_mov_b32 exec_lo, 0x00f000f0")
        a("s_mov_b32 exec_hi, 0x00f000f0")
        for t in range(16):
            a(f"buffer_load_dwordx4 {vr(W+4*t,4)}, v4, {sr(RW2,4)}, s12 offen nt")
            a("s_add_u32 s12, s12, 3584")
        a("s_mov_b64 exec, -1")
        a("s_cmp_lt_u32 s3, 4")
        a(f"s_cbranch_scc1 L_sels{u}")
        a(f"s_lshl_b32 s13, s{sIDX}, 15")
        a("s_and_b32 s12, s3, 3")
        a("s_lshl_b32 s12, s12, 8")
        a("s_add_u32 s13, s13, s12")
        a("v_lshlrev_b32 v4, 13, v2")
        a("v_lshl_add_u32 v4, v3, 4, v4")
        for t in range(8):
            a(f"buffer_load_dwordx4 {vr(WD+4*t,4)}, v4, {sr(RWD,4)}, s13 offen offset:{(t%4)*1024} nt")
            if t % 4 == 3: a("s_add_u32 s13, s13, 4096")
        a.label(f"L_sels{u}")
        make_sels(a, SEL, 3, 8, 9, 15)
        if early: a("s_barrier")

    def ao_addr(self):
        a = self.a
        a(f"s_lshl_b32 s12, s{sB}, 5")
        a(f"s_lshl_b32 s13, s{sHKV}, 2")
        a("s_add_u32 s12, s12, s13")
        a("s_lshl_b32 s13, s12, 13")
        a(f"s_lshl_b32 vcc_lo, s{sS}, 9")
        a("s_add_u32 s13, s13, vcc_lo")
        a(f"s_add_u32 s13, s13, {WS_AO:#x}")
        a("s_lshl_b32 s12, s12, 7")
        a(f"s_lshl_b32 vcc_lo, s{sS}, 3")
        a("s_add_u32 s12, s12, vcc_lo")
        a(f"s_add_u32 s12, s12, {WS_AM:#x}")

    def c_addr(self, v, bshift):
        a = self.a
        a(f"v_lshrrev_b32 v{v}, 1, v{vG}")
        a(f"v_lshlrev_b32 v{v}, {bshift}, v{v}")
        a(f"v_lshl_add_u32 v{v}, v{vI}, 5, v{v}")
        a(f"v_and_b32 v7, 1, v{vG}")
        a(f"v_lshl_add_u32 v{v}, v7, 4, v{v}")

    def xwave_reduce(self, ACC, T, done):
        a = self.a
        a("v_lshlrev_b32 v4, 4, v0")
        a("s_nop 7")
        a(f"ds_write_b128 v4, {vr(ACC,4)} offset:{LR}")
        a("s_waitcnt lgkmcnt(0)")
        self.barrier()
        self.only_waves_below(1, done)
        a(f"v_lshlrev_b32 v4, 4, v{vLane}")
        for w in range(8):
            a(f"ds_read_b128 {vr(T+4*w,4)}, v4 offset:{LR+1024*w}")
        for w in range(1, 8):
            a(f"s_waitcnt lgkmcnt({7-w})")
            for r in range(4):
                a(f"v_add_f32 v{T+r}, v{T+r}, v{T+4*w+r}")

    def gen(self):
        a = self.a
        name = NAME + "_kernel"
        kernel_begin(a, name)
        a("s_cmp_ge_u32 s2, 256")
        a("s_cbranch_scc1 L_exit")
        self.stamp(0)
        load_ptrs(a)
        if self.transpose:
            a("s_and_b32 s3, s2, 15")
            a("s_lshl_b32 s3, s3, 4")
            a("s_lshr_b32 s2, s2, 4")
            a("s_or_b32 s2, s2, s3")
        a("v_and_b32 v1, 63, v0")
        a("v_lshrrev_b32 v2, 4, v1")
        a("v_and_b32 v3, 15, v0")
        a("v_lshrrev_b32 v4, 6, v0")
        a("s_mov_b32 s6, 0xff00ff00")
        a("s_mov_b32 s7, 0xff00ff00")
        a("v_readfirstlane_b32 s3, v4")
        a(f"s_and_b32 s{sHKV}, s2, 7")
        a(f"s_bfe_u32 s{sB}, s2, 0x10003")
        a(f"s_lshr_b32 s{sS}, s2, 4")
        a(f"s_lshr_b32 s{sJ}, s2, 3")
        a(f"s_mov_b32 s{sL2E}, {LOG2E:#x}")
        a(f"s_mov_b32 s{sSC}, {SCALE:#x}")
        a(f"s_mov_b32 s{sDRY}, 0")
        a(f"s_mov_b32 s{sTO}, 0x200000")
        a(f"s_mov_b32 s{sROLE}, 0")
        a("s_cmp_lt_u32 s2, 120")
        a(f"s_cselect_b32 s{sROLE}, 3, s{sROLE}")
        a("s_cmp_lt_u32 s2, 64")
        a(f"s_cselect_b32 s{sROLE}, 2, s{sROLE}")
        a("s_cmp_lt_u32 s2, 32")
        a(f"s_cselect_b32 s{sROLE}, 1, s{sROLE}")
        a(f"s_and_b32 s{sIDX}, s{sJ}, 3")
        if self.notail: a(f"s_mov_b32 s{sROLE}, 0")
        F_ = self.frag
        a(f"s_mov_b32 s{sM+1}, {(128-F_)*4096:#x}")
        a(f"s_cmp_eq_u32 s{sROLE}, 2")
        a(f"s_cmov_b32 s{sM+1}, {(128-F_-self.dwo)*4096:#x}")
        a(f"s_cmp_eq_u32 s{sROLE}, 3")
        a(f"s_cmov_b32 s{sM+1}, {(128-F_-self.dffn)*4096:#x}")
        a(f"s_lshl_b32 s{sM+2}, s{sS}, 19")
        a(f"s_lshl_b32 s13, s{sB}, 3")
        a(f"s_add_u32 s13, s13, s{sHKV}")
        a(f"s_lshl_b32 s{sM}, s13, 23")
        a("v_and_b32 v5, 3, v3")
        a("v_lshlrev_b32 v5, 10, v5")
        a("v_lshrrev_b32 v6, 2, v3")
        a("v_lshl_add_u32 v5, v6, 8, v5")
        a("v_lshl_add_u32 v5, v2, 4, v5")
        a("v_lshlrev_b32 v6, 8, v2")
        a("v_lshl_add_u32 v6, v3, 4, v6")
        a("s_cmp_ge_u32 s3, 4")
        a("s_cbranch_scc1 L_noprio")
        a("s_setprio 3")
        a.label("L_noprio")
        a(f"s_mov_b32 s{sIDX+1}, s3")
        a(f"v_mov_b32 v{vTa}, {LCNT}")
        a(f"v_mov_b32 v{vT1}, 0x1000")
        a("v_mov_b32 v8, 0")
        a(f"v_mov_b32 v9, {1 if self.noq else 0}")
        a("v_mov_b32 v10, 0")
        a("v_mov_b32 v11, 0")
        a(f"ds_write_b128 v{vTa}, v[8:11]")
        for r in range(4):
            a(f"v_mov_b32 v{12+r}, {EMPTY:#x}")
        a(f"v_lshlrev_b32 v4, 4, v{vLane}")
        a(f"ds_write_b128 v4, v[12:15] offset:{LCH}")
        a("s_waitcnt lgkmcnt(0)")
        a(f"s_load_dword s{sTAG}, s[{P_WS}:{P_WS+1}], {WS_EPOCH}")
        make_srd(a, RX, P_X, 2048)
        X = 8; Y = 16; F = 32
        for rr, p in ((RK, P_K), (RV, P_V)):
            a(f"s_add_u32 s{rr}, s{p}, s{sM}")
            a(f"s_addc_u32 s{rr+1}, s{p+1}, 0")
            a(f"s_and_b32 s{rr+1}, s{rr+1}, 0xffff")
            a(f"s_mov_b32 s{rr+2}, 0x800000")
            a(f"s_mov_b32 s{rr+3}, 0x00020000")
        make_srd(a, RWS, P_WS, 0x400000 if self.stamps else WS_END)
        a(f"s_mov_b32 s20, s{sM+2}")
        a(f"s_mov_b32 s21, s{sM+1}")
        if self.noprod:
            a("s_barrier")
            a("s_branch L_noqld")
        a("s_cmp_lt_u32 s2, 128")
        a("s_cbranch_scc1 L_noprod")
        a("s_cmp_ge_u32 s3, 2")
        a("s_cbranch_scc1 L_noprod")
        make_srd(a, RW1, P_WQ, 512 * 4096 * 2)
        a(f"v_lshlrev_b32 v4, 5, v{vLane}")
        a(f"buffer_load_dwordx4 {vr(X,4)}, v4, {sr(RX,4)}, 0 offen")
        a(f"buffer_load_dwordx4 {vr(X+4,4)}, v4, {sr(RX,4)}, 0 offen offset:16")
        a("v_lshrrev_b32 v4, 3, v3")
        a("v_lshlrev_b32 v4, 10, v4")
        a("v_lshl_add_u32 v4, v2, 5, v4")
        a(f"s_and_b32 s{sJ}, s2, 31")
        a("s_bfe_u32 s13, s2, 0x20005")
        a("s_lshl_b32 s13, s13, 1")
        a(f"s_add_u32 s{sM+2}, s13, s3")
        a(f"s_lshl_b32 s12, s{sM+2}, 7")
        a(f"buffer_load_dwordx4 {vr(Y,4)}, v4, {sr(RX,4)}, s12 offen")
        a(f"buffer_load_dwordx4 {vr(Y+4,4)}, v4, {sr(RX,4)}, s12 offen offset:16")
        a(f"s_lshl_b32 s13, s{sM+2}, 19")
        a(f"s_lshl_b32 s12, s{sJ}, 8")
        a("s_add_u32 s13, s13, s12")
        a("v_lshlrev_b32 v4, 17, v2")
        a("v_lshl_add_u32 v4, v3, 4, v4")
        for t in range(16):
            a(f"buffer_load_dwordx4 {vr(RING+4*t,4)}, v4, {sr(RW1,4)}, s13 offen nt")
            a("s_add_u32 s13, s13, 8192")
        a("s_barrier")
        make_sels(a, SEL, 3, 48, 49, 15)
        a("v_lshrrev_b32 v4, 1, v2")
        a("v_lshlrev_b32 v4, 13, v4")
        a("v_lshl_add_u32 v4, v3, 6, v4")
        a("v_and_b32 v7, 1, v2")
        a("v_lshl_add_u32 v4, v7, 5, v4")
        a(f"s_lshl_b32 s13, s{sJ}, 14")
        a(f"s_lshl_b32 s12, s{sM+2}, 10")
        a("s_add_u32 s13, s13, s12")
        a(f"s_add_u32 s13, s13, {WS_QP:#x}")
        a("s_waitcnt vmcnt(16)")
        ln_stats(a, X, F, 50, 51, 48, 49, 6)
        ln_apply(a, Y, 8, 50, 51, 48, 49)
        a("s_waitcnt lgkmcnt(0)")
        a(f"s_add_u32 s12, s{sTAG}, {TAGK:#x}")
        for r in range(4):
            a(f"v_mov_b32 v{9+2*r}, s12")
        gemv_mfma(a, Y, 16, RING, SEL, 52, 56, 60, wait=lambda t: a(f"s_waitcnt vmcnt({15-t})"))
        a("s_nop 7")
        for r in range(4):
            a(f"v_mov_b32 v{8+2*r}, v{60+r}")
        a(f"buffer_store_dwordx4 v[8:11], v4, {sr(RWS,4)}, s13 offen sc1")
        a(f"buffer_store_dwordx4 v[12:15], v4, {sr(RWS,4)}, s13 offen offset:16 sc1")
        self.stamp(6)
        a("s_branch L_noqld")
        a.label("L_noprod")
        a("s_barrier")
        a("s_cmp_ge_u32 s2, 32")
        a("s_cbranch_scc1 L_noqld")
        a("s_cmp_ge_u32 s3, 2")
        a(f"s_cbranch_scc1 {'L_qbar2' if self.quiet else 'L_noqld'}")
        a(f"v_lshlrev_b32 v4, 4, v{vLane}")
        a("s_lshl_b32 s13, s2, 14")
        a("s_lshl_b32 s12, s3, 13")
        a("s_add_u32 s13, s13, s12")
        a(f"s_add_u32 s13, s13, {WS_QP:#x}")
        a("s_add_u32 s12, s13, 0x1000")
        a("s_waitcnt lgkmcnt(0)")
        a(f"s_add_u32 s{sTAG}, s{sTAG}, {TAGK:#x}")
        groups = [[(8 + 4 * k, 4, 4, "s13" if k < 4 else "s12", (k % 4) * 1024) for k in (2 * i, 2 * i + 1)] for i in range(4)]
        words = [[9 + 8 * i, 11 + 8 * i, 13 + 8 * i, 15 + 8 * i] for i in range(4)]
        self.poll(groups, 40, words=words, tail=False)
        for k in range(1, 8):
            a(f"v_add_f32 v8, v8, v{8+4*k}")
            a(f"v_add_f32 v10, v10, v{10+4*k}")
        a(f"v_lshlrev_b32 v4, 3, v{vLane}")
        a("s_lshl_b32 s13, s3, 14")
        a("s_lshl_b32 s12, s2, 9")
        a("s_add_u32 s13, s13, s12")
        a(f"s_add_u32 s13, s13, {WS_QG:#x}")
        a("v_cvt_pk_bf16_f32 v8, v8, v10")
        a(f"buffer_store_dwordx2 v[8:9], v4, {sr(RWS,4)}, s13 offen sc1")
        a(f"s_sub_u32 s{sTAG}, s{sTAG}, {TAGK:#x}")
        self.stamp(6)
        if self.quiet:
            a.label("L_qbar2")
            a("s_barrier")
        a.label("L_noqld")
        a(f"s_cmp_lg_u32 s{sROLE}, 3")
        a("s_cbranch_scc1 L_idx")
        a(f"s_sub_u32 s{sIDX}, s2, 64")
        a.label("L_idx")
        make_srd(a, ROUT, P_OUT, 2048)
        a(f"s_cmp_lg_u32 s3, {44 if self.noclean else 3}")
        a("s_cbranch_scc1 L_noclean")
        for r in range(4):
            a(f"v_mov_b32 v{8+r}, -1")
        self.ao_addr()
        a(f"v_lshrrev_b32 v4, 5, v{vLane}")
        a("v_lshlrev_b32 v4, 13, v4")
        a(f"v_and_b32 v7, 31, v{vLane}")
        a("v_lshl_add_u32 v4, v7, 4, v4")
        a(f"buffer_store_dwordx4 v[8:11], v4, {sr(RWS,4)}, s13 offen sc1")
        a("s_add_u32 s13, s13, 0x4000")
        a(f"buffer_store_dwordx4 v[8:11], v4, {sr(RWS,4)}, s13 offen sc1")
        a(f"v_and_b32 v4, 3, v{vLane}")
        a("v_lshlrev_b32 v4, 7, v4")
        a(f"buffer_store_dwordx2 v[8:9], v4, {sr(RWS,4)}, s12 offen sc1")
        a(f"s_cmp_eq_u32 s{sROLE}, 2")
        a("s_cbranch_scc0 L_cl_n2")
        self.c_addr(4, 11)
        a(f"s_lshl_b32 s13, s{sHKV}, 12")
        a(f"s_lshl_b32 s12, s{sIDX}, 9")
        a("s_add_u32 s13, s13, s12")
        a(f"s_add_u32 s13, s13, {WS_WP:#x}")
        a(f"buffer_store_dwordx4 v[8:11], v4, {sr(RWS,4)}, s13 offen sc1")
        a.label("L_cl_n2")
        a(f"s_cmp_eq_u32 s{sROLE}, 3")
        a("s_cbranch_scc0 L_cl_n3")
        a(f"v_lshlrev_b32 v4, 4, v{vLane}")
        a(f"s_lshl_b32 s13, s{sIDX}, 12")
        a(f"s_add_u32 s13, s13, {WS_DP:#x}")
        for k in range(4):
            a(f"buffer_store_dwordx4 v[8:11], v4, {sr(RWS,4)}, s13 offen offset:{k*1024} sc1")
        a.label("L_cl_n3")
        a("s_cmp_ge_u32 s2, 16")
        a("s_cbranch_scc1 L_cl_n4")
        a("v_mov_b32 v4, 0")
        a("s_lshl_b32 s13, s2, 8")
        a(f"s_add_u32 s13, s13, {WS_POOL:#x}")
        a(f"buffer_store_dword v4, v4, {sr(RWS,4)}, s13 offen sc1")
        a.label("L_cl_n4")
        a("s_lshl_b32 s13, s2, 2")
        a(f"s_add_u32 s13, s13, {WS_FLAG:#x}")
        a("v_mov_b32 v4, 0")
        a("s_waitcnt vmcnt(0) lgkmcnt(0)")
        a(f"s_add_u32 s12, s{sTAG}, {TAGK:#x}")
        a("v_mov_b32 v8, s12")
        a("s_mov_b64 exec, 1")
        a(f"buffer_store_dword v8, v4, {sr(RWS,4)}, s13 offen sc1")
        a("s_mov_b64 exec, -1")
        a.label("L_noclean")
        if self.stamps:
            a("s_cmp_lt_u32 s3, 2")
            a("s_cbranch_scc1 L_nst6")
            self.stamp(6)
            a.label("L_nst6")
        if self.latew:
            for rr, p, nb in ((RW1, P_WO, 4096 * 512 * 2), (RW2, P_WU, 512 * 1792 * 2), (RWD, P_WD, 1792 * 512 * 2)):
                make_srd(a, rr, p, nb)
            a(f"s_cmp_lg_u32 s{sROLE}, 3")
            a("s_cbranch_scc1 L_ring")
            make_srd(a, RW1, P_WG, 512 * 1792 * 2)
        else:
            self.weights("L_ring", True)
        a.label("L_ring")
        def draw(dst):
            l1 = a.newlabel("L_df"); l2 = a.newlabel("L_dd")
            a("s_mov_b64 exec, 1")
            a(f"ds_add_rtn_u32 v{vTk}, v{vTa}, v{vT1}")
            a("s_mov_b64 exec, -1")
            a("s_waitcnt lgkmcnt(0)")
            a(f"v_readfirstlane_b32 s{dst}, v{vTk}")
            a("s_nop 0")
            a(f"s_cmp_lt_u32 s{dst}, s{sT0}")
            a(f"s_cbranch_scc1 {l1}")
            self.slow(dst, l2)
            a.label(l1)
            a(f"s_add_u32 s{dst}, s{dst}, s{sSLAB}")
            a(f"s_and_b32 s{dst}, s{dst}, 0x7fffff")
            a.label(l2)
        def cdraw(dst, skip):
            top = a.newlabel("L_cd")
            a.label(top)
            a(f"ds_read_b64 v[8:9], v{vTa}")
            a("s_waitcnt lgkmcnt(0)")
            a("v_readfirstlane_b32 s12, v9")
            a(f"v_readfirstlane_b32 s13, v8")
            a(f"v_add_u32 v9, 0x1000, v8")
            a("s_lshl_b32 s12, s12, 31")
            a("s_or_b32 s12, s12, s13")
            a(f"s_cmp_ge_u32 s12, {64*4096:#x}")
            a(f"s_cbranch_scc1 {skip}")
            a("s_mov_b64 exec, 1")
            a(f"ds_cmpst_rtn_b32 v{vTk}, v{vTa}, v8, v9")
            a("s_mov_b64 exec, -1")
            a("s_waitcnt lgkmcnt(0)")
            a(f"v_readfirstlane_b32 s12, v{vTk}")
            a("s_nop 0")
            a("s_cmp_lg_u32 s12, s13")
            a(f"s_cbranch_scc1 {top}")
            a(f"s_add_u32 s{dst}, s13, s{sSLAB}")
            a(f"s_and_b32 s{dst}, s{dst}, 0x7fffff")
        a("s_and_b32 s25, s2, 15")
        a(f"s_mul_i32 s25, s25, {self.rot*4096:#x}")
        a("s_add_u32 s20, s20, s25")
        a(f"s_mov_b32 s{sSLAB}, s20")
        a(f"s_mov_b32 s{sSB}, s21")
        a(f"s_mov_b32 s{sT0}, s21")
        for e in range(3):
            a(f"s_mov_b32 s{sE+e}, -1")
        a(f"s_mov_b32 s{sE+3}, 0")
        a("s_waitcnt lgkmcnt(0)")
        a(f"s_add_u32 s{sTAG}, s{sTAG}, {TAGK:#x}")
        if not self.nopoll:
            a("s_cmp_eq_u32 s3, 2")
            a("s_cbranch_scc1 L_qg")
        a("s_setprio 0")
        a.label("L_ring2")
        a("s_and_b32 s12, s2, 15")
        a("s_lshl_b32 s12, s12, 2")
        a(f"s_add_u32 s12, s12, {WS_FLAG:#x}")
        a("v_mov_b32 v4, 0")
        a(f"v_not_b32 v{vPF}, s{sTAG}")
        for d in range(2):
            ly = a.newlabel("L_y"); lj = a.newlabel("L_j")
            a(f"s_cmp_ge_u32 s3, {8 if self.olddraw & 1 else 7 if self.olddraw & 4 else self.park}")
            a(f"s_cbranch_scc1 {ly}")
            draw(sOF0 + d)
            a(f"s_branch {lj}")
            a.label(ly)
            a(f"s_mov_b32 s{sOF0+d}, {INVALID:#x}")
            cdraw(sOF0 + d, lj)
            a.label(lj)
            self.ldK(d); self.ldV(d)
            self.proghook()
        if not self.latew:
            a(f"s_cmp_ge_u32 s{sROLE}, 2")
            a("s_cbranch_scc1 L_waitq")
        if self.noe_old:
            a(f"s_cmp_lt_u32 s3, {self.park}")
            a("s_cbranch_scc1 L_waitq")
        for e in range(self.ne):
            if self.olddraw & 2:
                a(f"ds_read_b32 v8, v{vTa} offset:4")
                a("s_waitcnt lgkmcnt(0)")
                a("v_readfirstlane_b32 s12, v8")
                a("s_cmp_lg_u32 s12, 0")
                a("s_cbranch_scc1 L_haveq")
                draw(sE + e)
            else:
                cdraw(sE + e, "L_waitq")
            a(f"s_mov_b32 s{sE+3}, 1")
            self.ldK(2 + e); self.ldV(2 + e)
            self.proghook()
        a.label("L_waitq")
        a(f"ds_read_b32 v8, v{vTa} offset:4")
        a("s_waitcnt lgkmcnt(0)")
        a("v_readfirstlane_b32 s12, v8")
        a("s_cmp_lg_u32 s12, 0")
        a("s_cbranch_scc1 L_haveq")
        a(f"s_sub_u32 s{sTO}, s{sTO}, 1")
        a("s_cbranch_scc1 L_exit")
        a("s_sleep 2")
        a("s_branch L_waitq")
        a.label("L_qg")
        a(f"v_lshlrev_b32 v4, 4, v{vLane}")
        a(f"s_lshl_b32 s13, s{sB}, 14")
        a(f"s_lshl_b32 s12, s{sHKV}, 11")
        a("s_add_u32 s13, s13, s12")
        a(f"s_add_u32 s13, s13, {WS_QG:#x}")
        self.poll([[(8, 4, 4, "s13", 0), (12, 4, 4, "s13", 1024)]], 16, words=[[9, 11, 13, 15]], tail=False)
        a("v_mov_b32 v9, v10")
        a("v_mov_b32 v13, v14")
        a(f"v_lshlrev_b32 v4, 3, v{vLane}")
        a(f"ds_write_b64 v4, v[8:9] offset:{LQ}")
        a(f"ds_write_b64 v4, v[12:13] offset:{LQ+512}")
        a("v_mov_b32 v8, 1")
        a("s_waitcnt lgkmcnt(0)")
        a(f"ds_write_b32 v{vTa}, v8 offset:4")
        a("s_setprio 0")
        a("s_branch L_ring2")
        a.label("L_haveq")
        if self.qbar: a("s_barrier")
        self.stamp(1)
        a("v_lshrrev_b32 v4, 2, v3")
        a("v_lshlrev_b32 v4, 8, v4")
        a("v_lshl_add_u32 v4, v2, 4, v4")
        for j in range(4):
            a(f"ds_read_b128 {vr(Q+4*j,4)}, v4 offset:{LQ+j*64}")
        a(f"v_lshlrev_b32 v4, 4, v{vLane}")
        a(f"s_mov_b32 s13, {WS_FLAG:#x}")
        a(f"s_cmp_eq_u32 s{sROLE}, 0")
        a("s_cbranch_scc1 L_nofl")
        a(f"v_not_b32 v{FL}, s{sTAG}")
        a(f"buffer_load_dwordx4 {vr(FL,4)}, v4, {sr(RWS,4)}, s13 offen sc1")
        a.label("L_nofl")
        a("s_and_b32 s12, s2, 15")
        a("s_lshl_b32 s12, s12, 2")
        a(f"s_add_u32 s12, s12, {WS_FLAG:#x}")
        a("v_mov_b32 v4, 0")
        a(f"buffer_load_dword v{vPF}, v4, {sr(RWS,4)}, s12 offen sc1")
        for r in (0, 1, 4, 5, 8, 9, 12, 13, 16, 17):
            a(f"v_mov_b32 v{AW+r}, 0")
        for r in range(8):
            a(f"v_mov_b32 v{O0+r}, 0")
        a(f"v_mov_b32 v{vC}, 0xf149f2ca")
        a(f"v_mov_b32 v{vL}, 0")
        if self.park < 8:
            a("s_mov_b32 s29, 0")
            a(f"s_cmp_lt_u32 s3, {self.park}")
            a("s_cbranch_scc1 L_nopark")
            a(f"s_mov_b32 s29, {INVALID:#x}")
            a(f"s_mov_b32 s{sT0}, -1")
            a(f"v_mov_b32 v{vT1}, 0")
            if self.sprio:
                a("s_branch L_park2")
            a.label("L_nopark")
            if self.sprio:
                a(f"s_setprio {self.sprio}")
                a.label("L_park2")
        a(f"v_and_b32 v{vT}, 1, v3")
        a(f"v_lshlrev_b32 v{vT}, 4, v{vT}")
        a(f"v_mov_b32 v{vU}, 0xffff")
        a(f"v_lshlrev_b32 v{vU}, v{vT}, v{vU}")
        a(f"v_and_b32 v{vT}, 2, v3")
        a(f"v_cmp_eq_u32 vcc, 0, v{vT}")
        a("s_nop 1")
        a(f"v_cndmask_b32 v{vM0}, 0, v{vU}, vcc")
        a(f"v_cndmask_b32 v{vM1}, v{vU}, 0, vcc")
        a("s_waitcnt lgkmcnt(0)")
        a.raw(".p2align 3")
        a.label("L_loop")
        self.unit(0)
        self.unit(1)
        a(f"s_cmp_eq_u32 s{sE+3}, 0")
        a("s_cbranch_scc1 L_loop")
        a(f"s_waitcnt vmcnt({8*D})")
        a.label("L_edisp")
        if self.lazye:
            for e in range(1, self.ne):
                a(f"s_cmp_eq_u32 s{sE+3}, {e+1}")
                a(f"s_cbranch_scc1 L_e{e}")
            for e in range(self.ne):
                a.label(f"L_e{e}")
                a(f"s_mov_b32 s{sE+3}, 0")
                self.unit(2 + e)
                if e + 1 < self.ne:
                    a(f"s_mov_b32 s{sE+3}, {e+2}")
                    a("s_cmp_eq_u32 s29, 0")
                    a("s_cbranch_scc1 L_loop")
        else:
            a(f"s_mov_b32 s{sE+3}, 0")
            for e in range(self.ne):
                self.unit(2 + e)
        a("s_branch L_loop")
        for d in range(2):
            a.label(f"L_slow{d}")
            self.slow(sOF0 + d, f"L_back{d}")
        a.label("L_epi")
        a.raw(";TAIL_BEGIN")
        if self.lazye:
            a("s_waitcnt vmcnt(0)")
            a(f"s_cmp_lg_u32 s{sE+3}, 0")
            a("s_cbranch_scc1 L_edisp")
        self.stamp(2)
        xhalf32(a, vL, vU)
        xrow16(a, vL, vU)
        a("s_lshl_b32 s13, s3, 11")
        a("v_lshlrev_b32 v4, 9, v2")
        a("v_lshl_add_u32 v4, v3, 5, v4")
        a("v_add_u32 v4, s13, v4")
        a(f"ds_write_b128 v4, {vr(O0,4)} offset:{LO}")
        a(f"ds_write_b128 v4, {vr(O1,4)} offset:{LO+16}")
        a("v_lshrrev_b32 v4, 2, v3")
        a("v_lshlrev_b32 v4, 5, v4")
        a("s_lshl_b32 s13, s3, 2")
        a("v_add_u32 v4, s13, v4")
        a(f"ds_write_b32 v4, v{vC} offset:{LC}")
        a(f"ds_write_b32 v4, v{vL} offset:{LL}")
        a("v_mov_b32 v8, 1")
        a("s_waitcnt lgkmcnt(0)")
        a("s_mov_b64 exec, 1")
        a(f"ds_add_u32 v{vTa}, v8 offset:12")
        a("s_mov_b64 exec, -1")
        a("s_cmp_lt_u32 s3, 2")
        a("s_cbranch_scc1 L_comb")
        a("s_cmp_lg_u32 s3, 7")
        a("s_cbranch_scc1 L_epi2")
        self.agent()
        a.label("L_epi2")
        a(f"s_cmp_lt_u32 s{sROLE}, 2")
        a("s_cbranch_scc1 L_role")
        a(f"s_cmp_lt_u32 s3, {self.park}")
        a("s_cbranch_scc1 L_role")
        a(f"s_sub_u32 s13, s{sSB}, {self.wlead_wo*4096}")
        a(f"s_cmp_eq_u32 s{sROLE}, 3")
        a(f"s_cbranch_scc0 L_lww")
        a(f"s_sub_u32 s13, s{sSB}, {self.wlead_ffn*4096}")
        a.label("L_lww")
        a(f"ds_read_b96 v[8:10], v{vTa}")
        a(f"s_sub_u32 s{sTO}, s{sTO}, 1")
        a("s_cbranch_scc1 L_exit")
        a("s_sleep 4")
        a("s_waitcnt lgkmcnt(0)")
        a("v_or_b32 v8, v8, v10")
        a("s_nop 0")
        a("v_readfirstlane_b32 s12, v8")
        a("s_cmp_lt_u32 s12, s13")
        a("s_cbranch_scc1 L_lww")
        a("s_branch L_role")
        a.label("L_comb")
        self.ao_addr()
        a.label("L_cw")
        a(f"ds_read_b32 v8, v{vTa} offset:12")
        a(f"s_sub_u32 s{sTO}, s{sTO}, 1")
        a("s_cbranch_scc1 L_exit")
        a("s_waitcnt lgkmcnt(0)")
        a("v_readfirstlane_b32 vcc_lo, v8")
        a("s_cmp_lt_u32 vcc_lo, 8")
        a("s_cbranch_scc1 L_cw")
        self.stamp(4)
        CW = 8; LW = 16; OW = 24; OA = 56
        a("v_bfe_u32 v7, v0, 5, 2")
        a("v_lshlrev_b32 v4, 5, v7")
        for w in range(0, NW, 4):
            a(f"ds_read_b128 {vr(CW+w,4)}, v4 offset:{LC+4*w}")
            a(f"ds_read_b128 {vr(LW+w,4)}, v4 offset:{LL+4*w}")
        a("v_and_b32 v4, 127, v0")
        a("v_lshlrev_b32 v4, 4, v4")
        for w in range(NW):
            a(f"ds_read_b128 {vr(OW+4*w,4)}, v4 offset:{LO+2048*w}")
        a(f"s_waitcnt lgkmcnt({NW})")
        a(f"v_max_f32 v{vC}, v{CW}, v{CW+1}")
        for w in range(2, NW, 2):
            a(f"v_max3_f32 v{vC}, v{vC}, v{CW+w}, v{CW+w+1}")
        for w in range(NW):
            a(f"v_sub_f32 v{CW+w}, v{CW+w}, v{vC}")
        for w in range(NW):
            a(f"v_exp_f32 v{CW+w}, v{CW+w}")
        a("v_lshlrev_b32 v4, 13, v7")
        a(f"v_mul_f32 v{vL}, v{CW}, v{LW}")
        for w in range(1, NW):
            a(f"v_fmac_f32 v{vL}, v{CW+w}, v{LW+w}")
        a("v_and_b32 v62, 31, v0")
        a("v_lshl_add_u32 v4, v62, 4, v4")
        for w in range(NW):
            a(f"s_waitcnt lgkmcnt({NW-1-w})")
            for r in range(4):
                if w == 0: a(f"v_mul_f32 v{OA+r}, v{CW}, v{OW+r}")
                else: a(f"v_fmac_f32 v{OA+r}, v{CW+w}, v{OW+4*w+r}")
        for r in range(4):
            a(f"v_min_u32 v{OA+r}, -2, v{OA+r}")
        a(f"v_min_u32 v{vC}, -2, v{vC}")
        a(f"v_min_u32 v{vL}, -2, v{vL}")
        self.store(OA, 4, 4, "s13")
        a("v_lshlrev_b32 v4, 7, v7")
        self.store(vC, 2, 4, "s12")
        a.label("L_role")
        self.stamp(3)
        a(f"s_cmp_eq_u32 s{sROLE}, 0")
        a("s_cbranch_scc1 L_done")
        if self.latew:
            self.weights("L_nolw2", False)
            a.label("L_nolw2")
        if not self.latew: a("s_waitcnt vmcnt(0)")
        if self.dry:
            l = a.newlabel("L_nw"); self.skip_if_dry(l); a("s_waitcnt vmcnt(0)"); a.label(l)
        self.check_flags()
        a(f"s_cmp_eq_u32 s{sROLE}, 3")
        a("s_cbranch_scc1 L_ffn")
        a(f"s_cmp_eq_u32 s{sROLE}, 1")
        a("s_cbranch_scc1 L_fin")
        P = RING; ML = RING + 32; A = 32; Y = 16
        a("s_lshr_b32 s12, s3, 2")
        a("s_lshl_b32 s12, s12, 5")
        a(f"s_lshl_b32 s13, s{sHKV}, 2")
        a("s_add_u32 s12, s12, s13")
        a("s_and_b32 s13, s3, 3")
        a("s_add_u32 s12, s12, s13")
        a("s_lshl_b32 vcc_hi, s12, 7")
        a(f"s_add_u32 s{sJ}, vcc_hi, {WS_AM:#x}")
        a("s_lshl_b32 s13, s12, 13")
        a(f"s_add_u32 s13, s13, {WS_AO:#x}")
        a("v_lshl_add_u32 v4, v2, 2, v3")
        a("v_and_b32 v4, 15, v4")
        a("v_lshlrev_b32 v4, 3, v4")
        a("v_lshlrev_b32 v7, 11, v2")
        a("v_lshl_add_u32 v7, v3, 4, v7")
        self.barrier()
        self.prepoll(ML, 2, 4, f"s{sJ}", 8, 16)
        groups = [[(P + 8 * i, 4, 7, "s13", 512 * i), (P + 8 * i + 4, 4, 7, "s13", 512 * i + 256)] for i in range(4)]
        groups.append([(ML, 2, 4, f"s{sJ}", 0)])
        (self.poll2 if self.p2 else self.poll)(groups, 8)
        self.stamp(4)
        a(f"v_mov_b32 v50, v{ML}")
        reduce_row16_add(a, 50, "max")
        a(f"v_sub_f32 v50, v{ML}, v50")
        a("v_exp_f32 v50, v50")
        a("s_nop 0")
        a(f"v_mul_f32 v51, v50, v{ML+1}")
        reduce_row16_add(a, 51)
        a("v_rcp_f32 v52, v51")
        a("s_nop 0")
        a("v_fma_f32 v53, -v51, v52, 1.0")
        a("v_fmac_f32 v52, v53, v52")
        a("v_mul_f32 v50, v50, v52")
        a("v_lshrrev_b32 v4, 1, v2")
        a("v_lshlrev_b32 v4, 7, v4")
        for r in range(8):
            a(f"v_mul_f32_dpp v{A+r}, v50, v{P+r} row_newbcast:0 row_mask:0xf bank_mask:0xf")
        for i in range(1, 4):
            for r in range(8):
                a(f"v_fmac_f32_dpp v{A+r}, v50, v{P+8*i+r} row_newbcast:{i} row_mask:0xf bank_mask:0xf")
        a("v_lshl_add_u32 v4, v3, 3, v4")
        a("v_and_b32 v7, 1, v2")
        for r in range(4):
            a(f"v_permlane32_swap_b32 v{A+r}, v{A+4+r}")
        for r in range(4):
            a(f"v_add_f32 v{A+r}, v{A+r}, v{A+4+r}")
        a("v_lshl_add_u32 v4, v7, 2, v4")
        a("s_lshl_b32 s13, s3, 8")
        for r in range(2):
            a(f"v_permlane16_swap_b32 v{A+r}, v{A+2+r}")
        for r in range(2):
            a(f"v_add_f32 v{A+r}, v{A+r}, v{A+2+r}")
        a("v_add_u32 v4, s13, v4")
        a(f"v_cvt_pk_bf16_f32 v{A}, v{A}, v{A+1}")
        a(f"ds_write_b32 v4, v{A} offset:{LX}")
        a("v_lshrrev_b32 v4, 3, v3")
        a("v_lshlrev_b32 v4, 10, v4")
        a("v_lshl_add_u32 v4, v2, 5, v4")
        a("s_lshl_b32 s13, s3, 7")
        a("v_add_u32 v4, s13, v4")
        a("s_waitcnt lgkmcnt(0)")
        self.barrier()
        a(f"ds_read_b128 {vr(Y,4)}, v4 offset:{LX}")
        a(f"ds_read_b128 {vr(Y+4,4)}, v4 offset:{LX+16}")
        a("s_waitcnt lgkmcnt(0)")
        gemv_mfma(a, Y, 16, W, SEL, 52, 56, 60)
        self.xwave_reduce(60, 8, "L_done")
        for r in range(4):
            a(f"v_min_u32 v{8+r}, -2, v{8+r}")
        self.c_addr(4, 11)
        a(f"s_lshl_b32 s13, s{sHKV}, 12")
        a(f"s_lshl_b32 s12, s{sIDX}, 9")
        a("s_add_u32 s13, s13, s12")
        a(f"s_add_u32 s13, s13, {WS_WP:#x}")
        self.store(8, 4, 4, "s13")
        a("s_branch L_done")
        a.label("L_ffn")
        P = RING; X = 8; Y = 16; F = 32
        a("v_lshlrev_b32 v4, 3, v0")
        a("v_lshlrev_b32 v7, 2, v0")
        l = a.newlabel("L_nx")
        self.skip_if_dry(l)
        a(f"buffer_load_dword v{P+16}, v7, {sr(RX,4)}, 0 offen ;POLL")
        a.label(l)
        a(f"s_mov_b32 s13, {WS_WP:#x}")
        a(f"s_mov_b32 s{sJ}, {WS_WP+0x4000:#x}")
        self.barrier()
        a(f"v_and_b32 v8, 7, v{vLane}")
        a("v_lshlrev_b32 v8, 12, v8")
        self.prepoll(P, 1, 8, "s13", 9, 56)
        a("v_add_u32 v69, 0x1000, v4")
        a("v_add_u32 v70, 0x2000, v4")
        a("v_add_u32 v71, 0x3000, v4")
        av = [4, 69, 70, 71]
        groups = [[(P + 2 * k, 2, av[k % 4], "s13" if k < 4 else f"s{sJ}", 0) for k in (2 * i, 2 * i + 1)] for i in range(4)]
        (self.poll2 if self.p2 else self.poll)(groups, 8)
        self.stamp(4)
        a(f"v_add_f32 v8, v{P}, v{P+2}")
        a(f"v_add_f32 v9, v{P+1}, v{P+3}")
        for k in range(2, 8):
            a(f"v_add_f32 v8, v8, v{P+2*k}")
            a(f"v_add_f32 v9, v9, v{P+2*k+1}")
        a("v_cvt_pk_bf16_f32 v8, 0, v8")
        a("v_cvt_pk_bf16_f32 v9, 0, v9")
        a(f"v_lshlrev_b32 v10, 16, v{P+16}")
        a(f"v_and_b32 v11, 0xffff0000, v{P+16}")
        if not self.newln:
            a("v_add_f32 v8, v8, v10")
            a("v_add_f32 v9, v9, v11")
            a("v_cvt_pk_bf16_f32 v8, v8, v9")
            a(f"ds_write_b32 v7, v8 offset:{LX}")
            a(f"v_lshlrev_b32 v7, 5, v{vLane}")
            a("v_lshrrev_b32 v4, 3, v3")
            a("v_lshlrev_b32 v4, 10, v4")
            a("v_lshl_add_u32 v4, v2, 5, v4")
            a("s_lshl_b32 s13, s3, 7")
            a("v_add_u32 v4, s13, v4")
            a("s_waitcnt lgkmcnt(0)")
            self.barrier()
            a(f"ds_read_b128 {vr(X,4)}, v7 offset:{LX}")
            a(f"ds_read_b128 {vr(X+4,4)}, v7 offset:{LX+16}")
            a(f"ds_read_b128 {vr(Y,4)}, v4 offset:{LX}")
            a(f"ds_read_b128 {vr(Y+4,4)}, v4 offset:{LX+16}")
            a("s_waitcnt lgkmcnt(2)")
            ln_stats(a, X, F, 50, 51, 48, 49, 6)
            a("s_waitcnt lgkmcnt(0)")
            ln_apply(a, Y, 8, 50, 51, 48, 49)
        else:
            LS = LA + 256
            a("v_add_f32 v8, v8, v10")
            a("v_add_f32 v9, v9, v11")
            a("v_cvt_pk_bf16_f32 v10, 0, v8")
            a("v_cvt_pk_bf16_f32 v11, 0, v9")
            a("v_cvt_pk_bf16_f32 v8, v8, v9")
            a("v_readfirstlane_b32 s12, v10")
            a(f"ds_write_b32 v7, v8 offset:{LX}")
            a("v_lshrrev_b32 v4, 3, v3")
            a("v_subrev_f32 v10, s12, v10")
            a("v_subrev_f32 v11, s12, v11")
            a("v_add_f32 v12, v10, v11")
            a("v_mul_f32 v13, v10, v10")
            a("v_fmac_f32 v13, v11, v11")
            a("v_lshlrev_b32 v7, 5, v4")
            for ctl in ("quad_perm:[1,0,3,2]", "quad_perm:[2,3,0,1]", "row_half_mirror", "row_mirror"):
                a(f"v_add_f32_dpp v12, v12, v12 {ctl} row_mask:0xf bank_mask:0xf")
                a("s_nop 0")
                a(f"v_add_f32_dpp v13, v13, v13 {ctl} row_mask:0xf bank_mask:0xf")
                if ctl != "row_mirror": a("s_nop 0")
            for op in ("v_permlane16_swap_b32", "v_permlane32_swap_b32"):
                a("v_mov_b32 v14, v12")
                a("v_mov_b32 v15, v13")
                a("s_nop 0")
                a(f"{op} v12, v14")
                a(f"{op} v13, v15")
                a("v_add_f32 v12, v12, v14")
                a("v_add_f32 v13, v13, v15")
            a("v_lshlrev_b32 v4, 10, v4")
            a("v_mul_f32 v14, 0x3c000000, v12")
            a("v_lshl_add_u32 v4, v2, 5, v4")
            a("v_fma_f32 v13, -v14, v12, v13")
            a("v_add_f32 v12, s12, v14")
            a("s_lshl_b32 s13, s3, 3")
            a("v_mov_b32 v14, s13")
            a(f"ds_write_b64 v14, v[12:13] offset:{LS}")
            a("s_lshl_b32 s13, s3, 7")
            a("v_add_u32 v4, s13, v4")
            a("s_waitcnt lgkmcnt(0)")
            self.barrier()
            a(f"ds_read_b128 v[8:11], v7 offset:{LS}")
            a(f"ds_read_b128 v[12:15], v7 offset:{LS+16}")
            a(f"ds_read_b128 {vr(Y,4)}, v4 offset:{LX}")
            a(f"ds_read_b128 {vr(Y+4,4)}, v4 offset:{LX+16}")
            a("s_waitcnt lgkmcnt(2)")
            a("v_add_f32 v50, v8, v10")
            a("v_add_f32 v51, v12, v14")
            a("v_add_f32 v9, v9, v11")
            a("v_add_f32 v50, v50, v51")
            a("v_add_f32 v13, v13, v15")
            a("v_mul_f32 v50, 0.25, v50" if False else "v_mul_f32 v50, 0x3e800000, v50")
            a("v_add_f32 v9, v9, v13")
            for r in (8, 10, 12, 14):
                a(f"v_sub_f32 v{r}, v{r}, v50")
            a("v_mul_f32 v51, v8, v8")
            for r in (10, 12, 14):
                a(f"v_fmac_f32 v51, v{r}, v{r}")
            a("v_mul_f32 v9, 0x3b000000, v9")
            a("v_fmac_f32 v9, 0x3e800000, v51" if False else "v_fmamk_f32 v51, v51, 0x3e800000, v9")
            a("v_cvt_pk_bf16_f32 v50, 0, v50")
            a("v_cvt_pk_bf16_f32 v51, 0, v51")
            a(f"v_add_f32 v51, {EPS:#x}, v51")
            a("v_cvt_pk_bf16_f32 v51, 0, v51")
            a("v_sqrt_f32 v51, v51")
            a("s_nop 0")
            a("v_cvt_pk_bf16_f32 v51, 0, v51")
            a("v_rcp_f32 v51, v51")
            a("s_waitcnt lgkmcnt(0)")
            for j in range(8):
                t = 32 + 2 * (j % 4)
                a(f"v_lshlrev_b32 v{t}, 16, v{Y+j}")
                a(f"v_and_b32 v{t+1}, 0xffff0000, v{Y+j}")
                a(f"v_pk_add_f32 v[{t}:{t+1}], v[{t}:{t+1}], v[50:51] op_sel_hi:[1,0] neg_lo:[0,1] neg_hi:[0,1]")
                a(f"v_cvt_pk_bf16_f32 v{t}, 0, v{t}")
                a(f"v_cvt_pk_bf16_f32 v{t+1}, 0, v{t+1}")
                a(f"v_pk_mul_f32 v[{t}:{t+1}], v[{t}:{t+1}], v[50:51] op_sel:[0,1] op_sel_hi:[1,1]")
                a(f"v_cvt_pk_bf16_f32 v{Y+j}, v{t}, v{t+1}")
        gemv_mfma(a, Y, 16, W, SEL, 52, 56, 60)
        a("v_lshlrev_b32 v4, 4, v0")
        a("s_nop 7")
        a(f"ds_write_b128 v4, {vr(60,4)} offset:{LR}")
        a(f"v_lshrrev_b32 v4, 5, v{vLane}")
        a("v_lshlrev_b32 v4, 9, v4")
        a(f"v_bfe_u32 v7, v{vLane}, 2, 1")
        a("v_lshl_add_u32 v4, v7, 8, v4")
        a(f"v_bfe_u32 v7, v{vLane}, 3, 2")
        a("v_lshl_add_u32 v4, v7, 4, v4")
        a(f"v_and_b32 v7, 3, v{vLane}")
        a("v_lshl_add_u32 v4, v7, 2, v4")
        a("s_waitcnt lgkmcnt(0)")
        self.barrier()
        a("s_cmp_lt_u32 s3, 4")
        a("s_cbranch_scc1 L_done")
        G = 8
        for w in range(8):
            a(f"ds_read_b32 v{G+w}, v4 offset:{LR+1024*w}")
            a(f"ds_read_b32 v{G+8+w}, v4 offset:{LR+1024*w+64}")
        a("s_lshl_b32 s12, s3, 7")
        a(f"v_lshl_add_u32 v4, v{vLane}, 1, s12")
        a("v_lshrrev_b32 v31, 3, v3")
        a("v_lshlrev_b32 v31, 6, v31")
        a("v_lshl_add_u32 v31, v2, 4, v31")
        a("v_add_u32 v31, s12, v31")
        for w in range(1, 8):
            a(f"s_waitcnt lgkmcnt({14-2*w})")
            a(f"v_add_f32 v{G}, v{G}, v{G+w}")
            a(f"v_add_f32 v{G+8}, v{G+8}, v{G+8+w}")
        a(f"v_cvt_pk_bf16_f32 v{G}, 0, v{G}")
        a(f"v_cvt_pk_bf16_f32 v{G+8}, 0, v{G+8}")
        a(f"v_mul_f32 v{G+1}, 0xbfb8aa3b, v{G}")
        a(f"v_exp_f32 v{G+1}, v{G+1}")
        a("s_nop 0")
        a(f"v_add_f32 v{G+1}, 1.0, v{G+1}")
        a(f"v_rcp_f32 v{G+2}, v{G+1}")
        a("s_nop 0")
        a(f"v_mul_f32 v{G+3}, v{G}, v{G+2}")
        a(f"v_fma_f32 v{G+4}, -v{G+3}, v{G+1}, v{G}")
        a(f"v_fmac_f32 v{G+3}, v{G+4}, v{G+2}")
        a(f"v_cvt_pk_bf16_f32 v{G+3}, 0, v{G+3}")
        a(f"v_mul_f32 v{G+3}, v{G+3}, v{G+8}")
        a(f"v_cvt_pk_bf16_f32 v{G+3}, v{G+3}, v{G+3}")
        a(f"ds_write_b16 v4, v{G+3} offset:{LX-512}")
        self.c_addr(4, 11)
        a(f"s_lshl_b32 s13, s{sIDX}, 12")
        a("s_and_b32 s12, s3, 3")
        a("s_lshl_b32 s12, s12, 9")
        a("s_add_u32 s13, s13, s12")
        a(f"s_add_u32 s13, s13, {WS_DP:#x}")
        a("s_waitcnt lgkmcnt(0)")
        a(f"ds_read_b128 {vr(Y,4)}, v31 offset:{LX-512}")
        a("s_waitcnt lgkmcnt(0)")
        gemv_mfma(a, Y, 8, WD, SEL, 52, 56, 60)
        a("s_nop 7")
        for r in range(4):
            a(f"v_min_u32 v{60+r}, -2, v{60+r}")
        self.store(60, 4, 4, "s13")
        a("s_branch L_done")
        a.label("L_fin")
        self.only_waves_below(1, "L_done")
        P = RING; H = 8
        a(f"v_and_b32 v7, 7, v{vLane}")
        a("v_lshlrev_b32 v4, 4, v7")
        a("v_add_u32 v69, 0x1000, v4")
        a("v_add_u32 v70, 0x2000, v4")
        a("v_add_u32 v71, 0x3000, v4")
        a("v_lshlrev_b32 v7, 3, v7")
        a("s_lshl_b32 s12, s2, 6")
        l = a.newlabel("L_nx")
        self.skip_if_dry(l)
        a(f"buffer_load_dwordx2 {vr(P+60,2)}, v7, {sr(RX,4)}, s12 offen ;POLL")
        a.label(l)
        a("s_lshl_b32 s12, s2, 7")
        a(f"s_add_u32 s13, s12, {WS_WP:#x}")
        a(f"s_add_u32 s{sJ}, s12, {WS_WP+0x4000:#x}")
        groups = [[(P + 4 * k, 4, av[k % 4], "s13" if k < 4 else f"s{sJ}", 0) for k in (2 * i, 2 * i + 1)] for i in range(4)]
        self.poll(groups, 8, gate="sleep")
        for r in range(4):
            a(f"v_add_f32 v{H+r}, v{P+r}, v{P+4+r}")
        for k in range(2, 8):
            for r in range(4):
                a(f"v_add_f32 v{H+r}, v{H+r}, v{P+4*k+r}")
        for r in range(4):
            a(f"v_cvt_pk_bf16_f32 v{H+r}, 0, v{H+r}")
        a(f"v_lshlrev_b32 v12, 16, v{P+60}")
        a(f"v_and_b32 v13, 0xffff0000, v{P+60}")
        a(f"v_lshlrev_b32 v14, 16, v{P+61}")
        a(f"v_and_b32 v15, 0xffff0000, v{P+61}")
        for r in range(4):
            a(f"v_add_f32 v{H+r}, v{H+r}, v{12+r}")
        for r in range(4):
            a(f"v_cvt_pk_bf16_f32 v{H+r}, 0, v{H+r}")
        a(f"v_lshrrev_b32 v16, 3, v{vLane}")
        a("v_lshl_add_u32 v4, v16, 12, v4")
        for k in range(1, 4):
            a(f"v_add_u32 v{68+k}, {0x8000*k:#x}, v4")
        a("s_lshl_b32 s12, s2, 7")
        a(f"s_add_u32 s13, s12, {WS_DP:#x}")
        a(f"s_add_u32 s{sJ}, s13, 0x20000")
        groups = [[(P + 4 * k, 4, av[k % 4], "s13" if k < 4 else f"s{sJ}", 0) for k in range(2 * i, min(2 * i + 2, 7))] for i in range(4)]
        (self.poll2 if self.p2 else self.poll)(groups, 16)
        self.stamp(4)
        T = 12
        for r in range(4):
            a(f"v_add_f32 v{T+r}, v{P+r}, v{P+4+r}")
        for k in range(2, 7):
            for r in range(4):
                a(f"v_add_f32 v{T+r}, v{T+r}, v{P+4*k+r}")
        a("s_nop 1")
        for r in range(4):
            a(f"v_add_f32_dpp v{T+r}, v{T+r}, v{T+r} row_ror:8 row_mask:0xf bank_mask:0xf")
        for r in range(4):
            a(f"v_mov_b32 v{T+4+r}, v{T+r}")
        a("s_nop 0")
        for r in range(4):
            a(f"v_permlane16_swap_b32 v{T+r}, v{T+4+r}")
        for r in range(4):
            a(f"v_add_f32 v{T+r}, v{T+r}, v{T+4+r}")
        for r in range(4):
            a(f"v_mov_b32 v{T+4+r}, v{T+r}")
        a("s_nop 0")
        for r in range(4):
            a(f"v_permlane32_swap_b32 v{T+r}, v{T+4+r}")
        for r in range(4):
            a(f"v_add_f32 v{T+r}, v{T+r}, v{T+4+r}")
        for r in range(4):
            a(f"v_cvt_pk_bf16_f32 v{T+r}, 0, v{T+r}")
        for r in range(4):
            a(f"v_add_f32 v{H+r}, v{H+r}, v{T+r}")
        if self.pert:
            import struct
            el, dv = self.pert.split(":")
            bits = struct.unpack("<I", struct.pack("<f", float(dv)))[0]
            a("s_cmp_lg_u32 s2, 0")
            a("s_cbranch_scc1 L_nopert")
            a("s_mov_b64 exec, 1")
            a(f"v_add_f32 v{H+int(el)}, {bits:#x}, v{H+int(el)}")
            a("s_mov_b64 exec, -1")
            a.label("L_nopert")
        a(f"v_cvt_pk_bf16_f32 v{H}, v{H}, v{H+1}")
        a(f"v_cvt_pk_bf16_f32 v{H+1}, v{H+2}, v{H+3}")
        a("s_lshl_b32 s12, s2, 6")
        a("s_mov_b64 exec, 0xff")
        self.store(H, 2, 7, "s12", srd=ROUT, flags="")
        a("s_cmp_lg_u32 s2, 0")
        a("s_cbranch_scc1 L_noep")
        a(f"v_mov_b32 v8, s{sTAG}")
        a("v_mov_b32 v4, 0")
        a("s_mov_b64 exec, 1")
        self.store(8, 1, 4, "0", imm=WS_EPOCH, flags="")
        a.label("L_noep")
        a("s_mov_b64 exec, -1")
        a.label("L_done")
        a.raw(";TAIL_END")
        if self.dry:
            a(f"s_cmp_eq_u32 s{sDRY}, 1")
            a("s_cbranch_scc1 L_dryend")
        if self.stamps:
            self.stamp(5)
            a("s_getreg_b32 s12, hwreg(HW_REG_XCC_ID)")
            a("s_waitcnt lgkmcnt(0)")
            a(f"v_mov_b32 v8, s{sST+12}")
            a(f"v_mov_b32 v9, s{sST+2}")
            a(f"v_mov_b32 v10, s{sST+4}")
            a(f"v_mov_b32 v11, s{sST+8}")
            a("v_mov_b32 v4, 0")
            a("s_lshl_b32 s13, s2, 3")
            a("s_add_u32 s13, s13, s3")
            a("s_lshl_b32 s13, s13, 4")
            a(f"s_add_u32 s13, s13, {STAMP+0x8000:#x}")
            a("s_mov_b64 exec, 1")
            a(f"buffer_store_dwordx4 v[8:11], v4, {sr(RWS,4)}, s13 offen")
            a("s_mov_b64 exec, -1")
            a("s_cmp_lg_u32 s3, 1")
            a("s_cbranch_scc1 L_st0")
            a(f"v_mov_b32 v8, s{sST+12}")
            a(f"v_mov_b32 v9, s{sST+4}")
            a("v_mov_b32 v4, 0")
            a("s_lshl_b32 s13, s2, 3")
            a(f"s_add_u32 s13, s13, {STAMP+0x4000:#x}")
            a("s_mov_b64 exec, 1")
            a(f"buffer_store_dwordx2 v[8:9], v4, {sr(RWS,4)}, s13 offen")
            a.label("L_st0")
            a("s_cmp_lg_u32 s3, 0")
            a("s_cbranch_scc1 L_exit")
            for k in range(6):
                a(f"v_mov_b32 v{8+k}, s{sST+2*k}")
            a("v_mov_b32 v14, s12")
            a(f"v_mov_b32 v15, s{sROLE}")
            a("v_mov_b32 v4, 0")
            a("s_lshl_b32 s13, s2, 5")
            a(f"s_add_u32 s13, s13, {STAMP:#x}")
            a("s_mov_b64 exec, 1")
            a(f"buffer_store_dwordx4 v[8:11], v4, {sr(RWS,4)}, s13 offen")
            a(f"buffer_store_dwordx4 v[12:15], v4, {sr(RWS,4)}, s13 offen offset:16")
        if self.dbgst:
            make_srd(a, RW1, P_DBG, 256)
            a("s_mov_b64 exec, 1")
            for wg, base, ks in ((0, 0, (0, 1, 2, 3, 4, 5)), (40, 6, (3, 4, 5)), (70, 9, (3, 4, 5)), (200, 12, (0, 1, 2, 3))):
                l = a.newlabel("L_dg")
                a(f"s_cmp_lg_u32 s2, {wg}")
                a(f"s_cbranch_scc1 {l}")
                for i, k in enumerate(ks):
                    a(f"v_mov_b32 v8, s{sST+2*k}")
                    a(f"v_mov_b32 v4, {4*(base+i)}")
                    a(f"buffer_store_dword v8, v4, {sr(RW1,4)}, 0 offen")
                    a("s_nop 1")
                a.label(l)
        a.label("L_exit")
        a("s_endpgm")
        pass
        out = HEADER + f"; @launch grid=(256,1,1) block=(512,1,1) lds={LDS_BYTES}\n"
        out += '.amdgcn_target "amdgcn-amd-amdhsa--gfx950"\n.text\n' + a.text()
        out += '.section .rodata,"a"\n' + kernel_desc(name, NVGPR)
        return out

    def check_tail(self):
        on = False
        for ln in self.a.lines:
            if ln.startswith(";TAIL_BEGIN"): on = True; continue
            if ln.startswith(";TAIL_END"): on = False; continue
            if not on or ";POLL" in ln: continue
            s = ln.strip()
            m = re.match(r"(v_\w+|ds_read\w+|buffer_load\w+)\s+(v\[(\d+):(\d+)\]|v(\d+))", s)
            if not m or s.startswith("v_cmp"): continue
            regs = [int(m.group(5))] if m.group(5) else list(range(int(m.group(3)), int(m.group(4)) + 1))
            if "swap" in s:
                regs.append(int(re.findall(r"v(\d+)", s.split(",")[1])[0]))
            for r in regs:
                assert r in (4, 7) or 8 <= r <= 71, f"tail writes v{r}: {s}"

if __name__ == "__main__":
    import argparse
    ap = argparse.ArgumentParser()
    ap.add_argument("-o", default="fused.s")
    ap.add_argument("--stamps", action="store_true")
    ap.add_argument("--nodry", action="store_true")
    ap.add_argument("--pace", action="store_true")
    ap.add_argument("--qfirst", type=int, default=2)
    ap.add_argument("--ne", type=int, default=3)
    ap.add_argument("--pd", type=int, default=1)
    ap.add_argument("--notail", action="store_true")
    ap.add_argument("--noq", action="store_true")
    ap.add_argument("--qbar", action="store_true")
    ap.add_argument("--prog", action="store_true")
    ap.add_argument("--nopoll", action="store_true")
    ap.add_argument("--noprod", action="store_true")
    ap.add_argument("--noclean", action="store_true")
    ap.add_argument("--qsleep", type=int, default=0)
    ap.add_argument("--pool", type=int, default=256)
    ap.add_argument("--look", type=int, default=8)
    ap.add_argument("--chunk", type=int, default=4)
    ap.add_argument("--notr", action="store_true")
    ap.add_argument("--rot", type=int, default=0)
    ap.add_argument("--pert", default=None)
    ap.add_argument("--dbgst", action="store_true")
    ap.add_argument("--park", type=int, default=4)
    ap.add_argument("--olddraw", type=int, default=0)
    ap.add_argument("--lazye", action="store_true")
    ap.add_argument("--noe_old", action="store_true")
    ap.add_argument("--sprio", type=int, default=0)
    ap.add_argument("--frag", type=int, default=4)
    ap.add_argument("--p2", action="store_true")
    ap.add_argument("--oldln", action="store_true")
    ap.add_argument("--pslp", type=int, default=4)
    ap.add_argument("--quiet", action="store_true")
    ap.add_argument("--earlyw", action="store_true")
    ap.add_argument("--rolepool", type=int, default=1)
    ap.add_argument("--wlwo", type=int, default=8)
    ap.add_argument("--wlffn", type=int, default=-100)
    ap.add_argument("--dwo", type=int, default=16)
    ap.add_argument("--dffn", type=int, default=0)
    x = ap.parse_args()
    open(x.o, "w").write(Gen(stamps=x.stamps, dry=False, pace=x.pace, qfirst=x.qfirst, ne=x.ne, pd=x.pd, notail=x.notail, noq=x.noq, qbar=x.qbar, prog=x.prog, nopoll=x.nopoll, noprod=x.noprod, noclean=x.noclean, qsleep=x.qsleep, pool=x.pool, look=x.look, chunk=x.chunk, rot=x.rot, pert=x.pert, dbgst=x.dbgst, park=x.park, olddraw=x.olddraw, lazye=x.lazye, sprio=x.sprio, noe_old=x.noe_old, frag=x.frag, p2=x.p2, pslp=x.pslp, newln=not x.oldln, quiet=x.quiet, latew=not x.earlyw, rolepool=x.rolepool, wlead_wo=x.wlwo, wlead_ffn=x.wlffn, transpose=not x.notr, dwo=x.dwo, dffn=x.dffn).gen())
```

```python
import sys, re
from gen_common import *

WS_EPOCH = 0x0
WS_FLAG = 0x1000
WS_QP = 0x100000
WS_POOL = 0x18000
WS_QG = 0x2000
WS_AM = 0xA000
WS_WP = 0xC000
WS_DP = 0x20000
WS_AO = 0x80000
WS_END = 0x180000
STAMP = 0x200000
TAGK = 0x9E3779B9

sWG, sWV, sL2E, sSC, sMK = 2, 3, 4, 5, 6
sHKV, sB, sS, sJ = 8, 9, 10, 11
sOF0, sOF1 = 14, 15
RK, RV, RW1, RWS, RW2, RWD, RX, ROUT = 40, 44, 48, 52, 56, 60, 64, 68
sTAG, sROLE, sDRY, sTO, sIDX = 72, 73, 74, 75, 76
sM = 78
sST = 88
sE = 16
vLane, vG, vI = 1, 2, 3
vKo, vVo = 5, 6
Q = 8; O0, O1 = 24, 28; AW = 32; S = 52; R = 56
vC, vL, vAa, vAo, vT, vU, vM0, vM1, vCn = 60, 61, 62, 63, 64, 65, 66, 67, 68
vTk, vTa, vT1 = 69, 70, 71
RING = 72
W = 136; WD = 200; SEL = 232; FL = 240
NVGPR = 248
D = 2
NW = 8
LQ = 0
LO = 1024; LC = LO + NW * 2048; LL = LC + 128
LX = 1024
LR = 3072
LA = 11264
LCNT = LL + 128
LQF = LCNT + 4
LCH = LCNT + 16
LDS_BYTES = LCH + 1024 + 16
EMPTY = 0xFFFFFFFE
INVALID = 0x40000000
sSLAB, sT0, sSB = 22, 23, 24
vPF = 244
vRQ = 245
sPD = 30


class Gen:
    def __init__(self, stamps=False, dry=True, pol="nt", pace=False, dwo=16, dffn=24, qfirst=2, ne=3, pd=1, notail=False, noq=False, qbar=False, prog=False, nopoll=False, noprod=False, noclean=False, qsleep=0, pool=256, look=8, transpose=True, chunk=4, rot=0, pert=None, dbgst=False, park=4, olddraw=0, lazye=False, sprio=0, noe_old=False, frag=4, p2=True, pslp=4, newln=True, quiet=False, latew=True, rolepool=1, wlead_wo=8, wlead_ffn=-100, progdone=False, r2=0, qlin=True):
        self.a = Asm(); self.stamps = stamps; self.dry = dry; self.pol = pol; self.pace = pace
        self.dwo = dwo; self.dffn = dffn; self.qfirst = qfirst; self.ne = ne; self.pd = pd; self.notail = notail; self.noq = noq; self.qbar = qbar; self.prog = prog; self.nopoll = nopoll; self.noprod = noprod; self.noclean = noclean; self.qsleep = qsleep; self.pool = pool; self.look = look; self.transpose = transpose; self.chunk = chunk; self.rot = rot; self.pert = pert; self.dbgst = dbgst; self.park = park; self.olddraw = olddraw; self.lazye = lazye; self.sprio = sprio; self.noe_old = noe_old; self.frag = frag; self.p2 = p2; self.pslp = pslp; self.newln = newln; self.quiet = quiet; self.latew = latew; self.rolepool = rolepool; self.wlead_wo = wlead_wo; self.wlead_ffn = wlead_ffn; self.progdone = progdone; self.r2 = r2; self.qlin = qlin; self.cshift = 12 + chunk.bit_length() - 1
        self.nst = 0

    def stamp(self, k):
        if self.stamps:
            self.a(f"s_memrealtime s[{sST+2*k}:{sST+2*k+1}]")

    def skip_if_dry(self, lab):
        if self.dry:
            self.a(f"s_cmp_eq_u32 s{sDRY}, 1")
            self.a(f"s_cbranch_scc1 {lab}")

    def barrier(self):
        a = self.a
        if self.dry:
            l = a.newlabel("L_nb")
            self.skip_if_dry(l)
            a("s_barrier")
            a.label(l)
        else:
            a("s_barrier")

    def only_waves_below(self, n, lab):
        a = self.a
        if self.dry:
            a(f"s_cmp_ge_u32 s{sIDX+1}, {n}")
        else:
            a(f"s_cmp_ge_u32 s{sWV}, {n}")
        a(f"s_cbranch_scc1 {lab}")

    def store(self, data, n, voff, soff, srd=RWS, imm=0, flags="sc1"):
        a = self.a
        op = {1: "dword", 2: "dwordx2", 4: "dwordx4"}[n]
        d = f"v{data}" if n == 1 else vr(data, n)
        l = None
        if self.dry:
            l = a.newlabel("L_ns"); self.skip_if_dry(l)
        a(f"buffer_store_{op} {d}, v{voff}, {sr(srd,4)}, {soff} offen offset:{imm} {flags}")
        if l: a.label(l)

    def poll(self, groups, tmp, bad="-1", words=None, gate=None, tail=True):
        a = self.a
        done = a.newlabel("L_pdone"); top = a.newlabel("L_poll")
        if tail: self.skip_if_dry(done)
        for k in range(len(groups)):
            a(f"s_mov_b64 s[{sM+2*k}:{sM+2*k+1}], -1")
        a.label(top)
        for k, grp in enumerate(groups):
            sk = a.newlabel("L_psk")
            a(f"s_mov_b64 exec, s[{sM+2*k}:{sM+2*k+1}]")
            a(f"s_cbranch_execz {sk}")
            for (dst, n, voff, soff, imm) in grp:
                op = {1: "dword", 2: "dwordx2", 4: "dwordx4"}[n]
                d = f"v{dst}" if n == 1 else vr(dst, n)
                a(f"buffer_load_{op} {d}, v{voff}, {sr(RWS,4)}, {soff} offen offset:{imm} sc1 ;POLL")
            a.label(sk)
        a("s_mov_b64 exec, -1")
        a("s_waitcnt vmcnt(0)")
        for k, grp in enumerate(groups):
            if words is None:
                ws = [dst + i for (dst, n, _, _, _) in grp for i in range(n)]
                a(f"v_max_u32 v{tmp}, v{ws[0]}, v{ws[1]}")
                i = 2
                while i < len(ws):
                    if i + 1 < len(ws):
                        a(f"v_max3_u32 v{tmp}, v{tmp}, v{ws[i]}, v{ws[i+1]}"); i += 2
                    else:
                        a(f"v_max_u32 v{tmp}, v{tmp}, v{ws[i]}"); i += 1
                a(f"v_cmp_eq_u32 s[{sM+2*k}:{sM+2*k+1}], -1, v{tmp}")
            else:
                ws = words[k]
                a(f"v_xor_b32 v{tmp}, s{sTAG}, v{ws[0]}")
                for w in ws[1:]:
                    a(f"v_xor_b32 v{tmp+1}, s{sTAG}, v{w}")
                    a(f"v_or_b32 v{tmp}, v{tmp}, v{tmp+1}")
                a(f"v_cmp_ne_u32 s[{sM+2*k}:{sM+2*k+1}], 0, v{tmp}")
        a("s_nop 0")
        a(f"s_mov_b64 vcc, s[{sM}:{sM+1}]")
        for k in range(1, len(groups)):
            a(f"s_or_b64 vcc, vcc, s[{sM+2*k}:{sM+2*k+1}]")
        a(f"s_cmp_eq_u64 vcc, 0")
        a(f"s_cbranch_scc1 {done}")
        a(f"s_sub_u32 s{sTO}, s{sTO}, 1")
        a(f"s_cbranch_scc1 L_exit")
        if gate == "sleep":
            a("s_sleep 8")
        elif not tail and self.qsleep:
            a(f"s_sleep {self.qsleep}")
        a(f"s_branch {top}")
        a.label(done)

    def poll2(self, groups, tmp):
        a = self.a
        done = a.newlabel("L_pdone"); top = a.newlabel("L_poll")
        n = sum(len(g) for g in groups)
        def issue(first):
            for k, grp in enumerate(groups):
                if not first:
                    a(f"s_or_b64 exec, s[{sM+2*k}:{sM+2*k+1}], 1")
                for (dst, nd, voff, soff, imm) in grp:
                    op = {1: "dword", 2: "dwordx2", 4: "dwordx4"}[nd]
                    d = f"v{dst}" if nd == 1 else vr(dst, nd)
                    a(f"buffer_load_{op} {d}, v{voff}, {sr(RWS,4)}, {soff} offen offset:{imm} sc1")
            if not first: a("s_mov_b64 exec, -1")
        issue(True)
        for k in range(len(groups)):
            a(f"s_mov_b64 s[{sM+2*k}:{sM+2*k+1}], -1")
        a(f"s_sleep {self.pslp}")
        a.label(top)
        issue(False)
        a(f"s_waitcnt vmcnt({n})")
        for k, grp in enumerate(groups):
            ws = [dst + i for (dst, nd, _, _, _) in grp for i in range(nd)]
            a(f"v_max_u32 v{tmp}, v{ws[0]}, v{ws[1]}")
            i = 2
            while i < len(ws):
                if i + 1 < len(ws):
                    a(f"v_max3_u32 v{tmp}, v{tmp}, v{ws[i]}, v{ws[i+1]}"); i += 2
                else:
                    a(f"v_max_u32 v{tmp}, v{tmp}, v{ws[i]}"); i += 1
            a(f"v_cmp_eq_u32 s[{sM+2*k}:{sM+2*k+1}], -1, v{tmp}")
        a(f"s_sub_u32 s{sTO}, s{sTO}, 1")
        a(f"s_cbranch_scc1 L_exit")
        a(f"s_or_b64 vcc, s[{sM}:{sM+1}], s[{sM+2}:{sM+3}]")
        for k in range(2, len(groups)):
            a(f"s_or_b64 vcc, vcc, s[{sM+2*k}:{sM+2*k+1}]")
        a(f"s_cbranch_scc1 {top}")

    def prepoll(self, dst, n, voff, soff, tmp, maxbad):
        a = self.a
        done = a.newlabel("L_gdone"); top = a.newlabel("L_gate")
        self.skip_if_dry(done)
        a.label(top)
        op = {1: "dword", 2: "dwordx2", 4: "dwordx4"}[n]
        d = f"v{dst}" if n == 1 else vr(dst, n)
        a(f"buffer_load_{op} {d}, v{voff}, {sr(RWS,4)}, {soff} offen sc1 ;POLL")
        a("s_waitcnt vmcnt(0)")
        a(f"v_cmp_eq_u32 vcc, -1, v{dst}")
        a("s_nop 0")
        a(f"s_bcnt1_i32_b64 s12, vcc")
        a(f"s_cmp_le_u32 s12, {maxbad}")
        a(f"s_cbranch_scc1 {done}")
        a(f"s_sub_u32 s{sTO}, s{sTO}, 1")
        a(f"s_cbranch_scc1 L_exit")
        a("s_sleep 8")
        a(f"s_branch {top}")
        a.label(done)

    def check_flags(self):
        a = self.a
        ok = a.newlabel("L_flok")
        self.skip_if_dry(ok)
        a(f"v_xor_b32 v8, s{sTAG}, v{FL}")
        for i in range(1, 4):
            a(f"v_xor_b32 v9, s{sTAG}, v{FL+i}")
            a(f"v_or_b32 v8, v8, v9")
        a("v_cmp_ne_u32 vcc, 0, v8")
        a("s_nop 0")
        a("s_cmp_eq_u64 vcc, 0")
        a(f"s_cbranch_scc1 {ok}")
        a(f"v_lshlrev_b32 v4, 4, v{vLane}")
        a(f"s_mov_b32 s13, {WS_FLAG:#x}")
        self.poll([[(FL, 4, 4, "s13", 0)]], 8, words=[[FL, FL + 1, FL + 2, FL + 3]], gate="sleep")
        a.label(ok)

    def ldK(self, slot):
        so = sOF0 + slot if slot < 2 else sE + slot - 2
        for j in range(4):
            self.a(f"buffer_load_dwordx4 {vr(RING+32*slot+4*j,4)}, v{vKo}, {sr(RK,4)}, s{so} offen offset:{j*64} {self.pol}")
    def ldV(self, slot):
        so = sOF0 + slot if slot < 2 else sE + slot - 2
        for t in range(4):
            self.a(f"buffer_load_dwordx4 {vr(RING+32*slot+16+4*t,4)}, v{vVo}, {sr(RV,4)}, s{so} offen offset:{t*1024} {self.pol}")

    def unit(self, d):
        a = self.a
        K = RING + 32 * d; V = K + 16
        ring = d < 2
        if ring:
            a(f"s_cmp_ge_u32 s{sOF0+d}, s{RK+2}")
            a("s_cbranch_scc1 L_epi")
            a("s_mov_b64 exec, 1")
            a(f"ds_add_rtn_u32 v{vTk}, v{vTa}, v{vT1}")
            a("s_mov_b64 exec, -1")
            a(f"s_waitcnt vmcnt({8*D-4})")
        else:
            a(f"s_cmp_ge_u32 s{sE+d-2}, s{RK+2}")
            a("s_cbranch_scc1 L_loop")
        for j in range(4):
            c = "0" if j == 0 else vr(S, 4)
            a(f"v_mfma_f32_16x16x32_bf16 {vr(S,4)}, {vr(K+4*j,4)}, {vr(Q+4*j,4)}, {c}")
            if j == 1 and ring:
                a("s_waitcnt lgkmcnt(0)")
                a(f"v_readfirstlane_b32 s{sOF0+d}, v{vTk}")
        if ring:
            a(f"s_cmp_ge_u32 s{sOF0+d}, s{sT0}")
            a(f"s_cbranch_scc1 L_slow{d}")
            a(f"s_add_u32 s{sOF0+d}, s{sOF0+d}, s{sSLAB}")
            a(f"s_and_b32 s{sOF0+d}, s{sOF0+d}, 0x7fffff")
            if self.park < 8: a(f"s_or_b32 s{sOF0+d}, s{sOF0+d}, s29")
            a.label(f"L_back{d}")
            self.ldK(d)
            a("s_nop 0")
        else:
            a("s_nop 7")
        for r in range(4):
            a(f"v_cvt_pk_bf16_f32 v{R+r}, 0, v{S+r}")
        for r in range(4):
            a(f"v_mul_f32 v{R+r}, s{sSC}, v{R+r}")
        for r in range(4):
            a(f"v_cvt_pk_bf16_f32 v{R+r}, 0, v{R+r}")
        a(f"v_max3_f32 v{vT}, v{R}, v{R+1}, v{R+2}")
        a(f"v_max_f32 v{vT}, v{vT}, v{R+3}")
        xhalf32(a, vT, vU, "max")
        xrow16(a, vT, vU, "max")
        a(f"v_mul_f32 v{vT}, s{sL2E}, v{vT}")
        a(f"v_max_f32 v{vCn}, v{vC}, v{vT}")
        a(f"v_sub_f32 v{vAa}, v{vC}, v{vCn}")
        a(f"v_exp_f32 v{vAa}, v{vAa}")
        for r in range(4):
            a(f"v_fma_f32 v{R+r}, v{R+r}, s{sL2E}, -v{vCn}")
        a(f"v_mov_b32 v{vC}, v{vCn}")
        for r in range(4):
            a(f"v_exp_f32 v{R+r}, v{R+r}")
        for g in range(4):
            a(f"v_mov_b32_dpp v{vAo}, v{vAa} row_newbcast:{4*g} row_mask:{1<<g:#x} bank_mask:0xf")
        a(f"v_mul_f32 v{vL}, v{vL}, v{vAa}")
        for t in range(4):
            a(f"v_cvt_pk_bf16_f32 v{vT}, v{R+t}, v{R+t}")
            a(f"v_and_b32 v{AW+4*t+2}, v{vT}, v{vM0}")
            a(f"v_and_b32 v{AW+4*t+3}, v{vT}, v{vM1}")
        for r in range(8):
            a(f"v_mul_f32 v{O0+r}, v{O0+r}, v{vAo}")
        a(f"v_add_f32 v{R}, v{R}, v{R+1}")
        a(f"v_add_f32 v{R+2}, v{R+2}, v{R+3}")
        a(f"v_add_f32 v{vL}, v{vL}, v{R}")
        a(f"v_add_f32 v{vL}, v{vL}, v{R+2}")
        if ring:
            a(f"s_waitcnt vmcnt({8*D-4})")
        for t in range(4):
            a(f"v_mfma_f32_16x16x32_bf16 {vr(O0,4)}, {vr(AW+4*t+2,4)}, {vr(V+4*t,4)}, {vr(O0,4)}")
            a(f"v_mfma_f32_16x16x32_bf16 {vr(O1,4)}, {vr(AW+4*t,4)}, {vr(V+4*t,4)}, {vr(O1,4)}")
        if ring: self.ldV(d)
        if ring: self.proghook()
        if self.progdone:
            l = a.newlabel("L_pd")
            a("v_mov_b32 v7, 0x1000")
            a("s_mov_b64 exec, 1")
            a(f"ds_add_rtn_u32 v7, v{vTa}, v7 offset:1040")
            a("s_mov_b64 exec, -1")
            a("s_waitcnt lgkmcnt(0)")
            a("v_readfirstlane_b32 s28, v7")
            a("s_and_b32 s12, s28, 0x7000")
            a(f"s_cbranch_scc1 {l}")
            a("s_memrealtime s[26:27]")
            a(f"s_lshr_b32 s12, s28, 13")
            a("s_lshl_b32 s13, s2, 7")
            a("s_add_u32 s13, s13, s12")
            a(f"s_add_u32 s13, s13, {STAMP+0x20000:#x}")
            a("s_waitcnt lgkmcnt(0)")
            a("v_mov_b32 v7, s26")
            a("v_mov_b32 v4, 0")
            a("s_mov_b64 exec, 1")
            a(f"buffer_store_dword v7, v4, {sr(RWS,4)}, s13 offen")
            a("s_mov_b64 exec, -1")
            a.label(l)

    def proghook(self):
        a = self.a
        if not self.prog: return
        l = a.newlabel("L_np")
        a(f"v_readfirstlane_b32 s28, v{vTk}")
        a("s_and_b32 s12, s28, 0x7000")
        a(f"s_cbranch_scc1 {l}")
        a("s_memrealtime s[26:27]")
        a(f"s_lshr_b32 s12, s28, 13")
        a("s_lshl_b32 s13, s2, 7")
        a("s_add_u32 s13, s13, s12")
        a(f"s_add_u32 s13, s13, {STAMP+0x20000:#x}")
        a("s_waitcnt lgkmcnt(0)")
        a("v_mov_b32 v7, s26")
        a("v_mov_b32 v4, 0")
        a("s_mov_b64 exec, 1")
        a(f"buffer_store_dword v7, v4, {sr(RWS,4)}, s13 offen")
        a("s_mov_b64 exec, -1")
        a.label(l)


    def slow(self, t, back):
        a = self.a
        spin = a.newlabel("L_sp")
        a(f"s_sub_u32 s{t}, s{t}, s{sSB}")
        a(f"s_lshr_b32 s12, s{t}, {self.cshift}")
        a("s_lshl_b32 s12, s12, 2")
        a("v_mov_b32 v4, s12")
        a(f"s_and_b32 s{t}, s{t}, {self.chunk*4096-1:#x}")
        a.label(spin)
        a(f"ds_read_b32 v7, v4 offset:{LCH}")
        a(f"s_sub_u32 s{sTO}, s{sTO}, 1")
        a("s_cbranch_scc1 L_exit")
        a("s_waitcnt lgkmcnt(0)")
        a("v_readfirstlane_b32 s12, v7")
        a(f"s_cmp_eq_u32 s12, {EMPTY:#x}")
        a(f"s_cbranch_scc1 {spin}")
        a(f"s_add_u32 s{t}, s{t}, s12")
        a(f"s_branch {back}")

    def agent(self):
        a = self.a
        a("s_setprio 3")
        a("s_and_b32 s13, s2, 15")
        a.label("L_agf")
        a("s_waitcnt vmcnt(0)")
        a(f"v_cmp_ne_u32 vcc, s{sTAG}, v{vPF}")
        a("s_nop 0")
        a("s_cmp_eq_u64 vcc, 0")
        a("s_cbranch_scc1 L_ag0")
        a(f"s_sub_u32 s{sTO}, s{sTO}, 1")
        a("s_cbranch_scc1 L_exit")
        a("s_lshl_b32 s12, s13, 2")
        a(f"s_add_u32 s12, s12, {WS_FLAG:#x}")
        a("v_mov_b32 v4, 0")
        a(f"buffer_load_dword v{vPF}, v4, {sr(RWS,4)}, s12 offen sc1")
        a("s_branch L_agf")
        a.label("L_ag0")
        a("s_lshl_b32 s13, s13, 8")
        a(f"s_add_u32 s13, s13, {WS_POOL:#x}")
        a(f"s_sub_u32 s16, s{sSB}, {self.look*4096}")
        a("s_mov_b32 s17, 0")
        a("s_and_b32 s12, s2, 12")
        a(f"s_mov_b32 s30, {(2*self.dwo+2*self.dffn)*4096:#x}")
        a("s_cmp_eq_u32 s12, 12")
        a(f"s_cmov_b32 s30, {(2*self.dwo+self.dffn)*4096:#x}")
        a(f"s_mov_b32 s31, {(128-self.frag)*4096:#x}")
        a("v_mov_b32 v8, 0")
        a(f"v_mov_b32 v9, {INVALID:#x}")
        a.label("L_ag1")
        a(f"ds_read_b32 v7, v{vTa}")
        a(f"s_sub_u32 s{sTO}, s{sTO}, 1")
        a("s_cbranch_scc1 L_exit")
        a("s_waitcnt lgkmcnt(0)")
        a("v_readfirstlane_b32 s12, v7")
        a("s_cmp_ge_u32 s12, s16")
        a("s_cbranch_scc1 L_ag2")
        a("s_sleep 3")
        a("s_branch L_ag1")
        a.label("L_ag2")
        if self.latew and self.rolepool < 2:
            a(f"s_cmp_ge_u32 s{sROLE}, 2" if self.rolepool == 0 else f"s_cmp_eq_u32 s{sROLE}, 2")
            a("s_cbranch_scc1 L_ag3")
        a("s_sub_u32 s12, s12, s16")
        a(f"s_lshr_b32 s12, s12, {self.cshift}")
        a("s_add_u32 s12, s12, 1")
        a("s_min_u32 s12, s12, 16")
        a(f"v_cmp_gt_u32 vcc, s12, v{vLane}")
        a(f"v_mov_b32 v7, {self.chunk*4096:#x}")
        a(f"v_add_u32 v4, s17, v{vLane}")
        a("v_lshlrev_b32 v4, 2, v4")
        a("s_mov_b64 exec, vcc")
        a(f"buffer_atomic_add v7, v8, {sr(RWS,4)}, s13 offen sc0 sc1")
        a("s_add_u32 s17, s17, s12")
        a(f"s_lshl_b32 s12, s12, {self.cshift}")
        a("s_add_u32 s16, s16, s12")
        a("s_waitcnt vmcnt(0)")
        F_ = self.frag; U = 4096
        a("v_subrev_u32 v10, s30, v7")
        a(f"v_lshrrev_b32 v11, {12+F_.bit_length()-1}, v10")
        a("v_lshlrev_b32 v11, 19, v11")
        a(f"v_and_b32 v10, {F_*U-1:#x}, v10")
        a(f"v_add3_u32 v10, v10, v11, s31")
        segs = [(0, 2, self.dwo), (self.dwo, 3, self.dwo), (2 * self.dwo, 4, self.dffn), (2 * self.dwo + self.dffn, 5, self.dffn)]
        a(f"v_add_u32 v11, {((segs[0][1]+1)*128-F_-segs[0][2]-segs[0][0])*U:#x}, v7")
        for st, sg, d in segs[1:]:
            if self.dwo + self.dffn == 0: break
            a(f"v_cmp_le_u32 vcc, {st*U:#x}, v7")
            a(f"v_add_u32 v12, {((sg+1)*128-F_-d-st)*U:#x}, v7")
            a("s_nop 0")
            a("v_cndmask_b32 v11, v11, v12, vcc")
        a("v_cmp_le_u32 vcc, s30, v7")
        a(f"s_add_u32 s12, s30, {16*F_*U:#x}")
        a("s_nop 0")
        a("v_cndmask_b32 v11, v11, v10, vcc")
        a("v_cmp_le_u32 vcc, s12, v7")
        a("v_add_u32 v7, s25, v11")
        a("v_and_b32 v7, 0x7fffff, v7")
        a("v_cndmask_b32 v7, v7, v9, vcc")
        a(f"ds_write_b32 v4, v7 offset:{LCH}")
        a("s_mov_b64 exec, -1")
        a("s_cmp_eq_u64 vcc, 0")
        a("s_cbranch_scc1 L_ag1")
        a.label("L_ag3")
        a(f"v_add_u32 v4, s17, v{vLane}")
        a("v_lshlrev_b32 v4, 2, v4")
        a(f"ds_write_b32 v4, v9 offset:{LCH}")
        a(f"ds_write_b32 v{vTa}, v9 offset:8")
        a("s_setprio 0")

    def weights(self, out, early):
        a = self.a
        u = a.newlabel('')
        a(f"s_cmp_lt_u32 s{sROLE}, 2")
        a(f"s_cbranch_scc1 {out}")
        a(f"s_cmp_eq_u32 s{sROLE}, 3")
        a(f"s_cbranch_scc1 L_ffn_w{u}")
        if early: make_srd(a, RW1, P_WO, 4096 * 512 * 2)
        a(f"s_lshl_b32 s13, s{sHKV}, 19")
        a("s_lshl_b32 s12, s3, 16")
        a("s_add_u32 s13, s13, s12")
        a(f"s_lshl_b32 s12, s{sIDX}, 8")
        a("s_add_u32 s13, s13, s12")
        a("v_lshlrev_b32 v4, 14, v2")
        a("v_lshl_add_u32 v4, v3, 4, v4")
        for t in range(16):
            a(f"buffer_load_dwordx4 {vr(W+4*t,4)}, v4, {sr(RW1,4)}, s13 offen offset:{(t%4)*1024} nt")
            if t % 4 == 3: a("s_add_u32 s13, s13, 4096")
        a(f"s_branch L_sels{u}")
        a.label(f"L_ffn_w{u}")
        if early: make_srd(a, RW1, P_WG, 512 * 1792 * 2)
        if early: make_srd(a, RW2, P_WU, 512 * 1792 * 2)
        if early: make_srd(a, RWD, P_WD, 1792 * 512 * 2)
        a("s_mul_i32 s13, s3, 64*3584")
        a(f"s_lshl_b32 s12, s{sIDX}, 6")
        a("s_add_u32 s13, s13, s12")
        a("s_mov_b32 s12, 16*3584")
        a("v_mul_lo_u32 v4, v2, s12")
        a("v_and_b32 v7, 3, v3")
        a("v_lshl_add_u32 v4, v7, 4, v4")
        a("s_mov_b32 s12, s13")
        a("s_mov_b32 exec_lo, 0x000f000f")
        a("s_mov_b32 exec_hi, 0x000f000f")
        for t in range(16):
            a(f"buffer_load_dwordx4 {vr(W+4*t,4)}, v4, {sr(RW1,4)}, s13 offen nt")
            a("s_add_u32 s13, s13, 3584")
        a("s_mov_b32 exec_lo, 0x00f000f0")
        a("s_mov_b32 exec_hi, 0x00f000f0")
        for t in range(16):
            a(f"buffer_load_dwordx4 {vr(W+4*t,4)}, v4, {sr(RW2,4)}, s12 offen nt")
            a("s_add_u32 s12, s12, 3584")
        a("s_mov_b64 exec, -1")
        a("s_cmp_lt_u32 s3, 4")
        a(f"s_cbranch_scc1 L_sels{u}")
        a(f"s_lshl_b32 s13, s{sIDX}, 15")
        a("s_and_b32 s12, s3, 3")
        a("s_lshl_b32 s12, s12, 8")
        a("s_add_u32 s13, s13, s12")
        a("v_lshlrev_b32 v4, 13, v2")
        a("v_lshl_add_u32 v4, v3, 4, v4")
        for t in range(8):
            a(f"buffer_load_dwordx4 {vr(WD+4*t,4)}, v4, {sr(RWD,4)}, s13 offen offset:{(t%4)*1024} nt")
            if t % 4 == 3: a("s_add_u32 s13, s13, 4096")
        a.label(f"L_sels{u}")
        make_sels(a, SEL, 3, 8, 9, 15)
        if early: a("s_barrier")

    def ao_addr(self):
        a = self.a
        a(f"s_lshl_b32 s12, s{sB}, 5")
        a(f"s_lshl_b32 s13, s{sHKV}, 2")
        a("s_add_u32 s12, s12, s13")
        a("s_lshl_b32 s13, s12, 13")
        a(f"s_lshl_b32 vcc_lo, s{sS}, 9")
        a("s_add_u32 s13, s13, vcc_lo")
        a(f"s_add_u32 s13, s13, {WS_AO:#x}")
        a("s_lshl_b32 s12, s12, 7")
        a(f"s_lshl_b32 vcc_lo, s{sS}, 3")
        a("s_add_u32 s12, s12, vcc_lo")
        a(f"s_add_u32 s12, s12, {WS_AM:#x}")

    def c_addr(self, v, bshift):
        a = self.a
        a(f"v_lshrrev_b32 v{v}, 1, v{vG}")
        a(f"v_lshlrev_b32 v{v}, {bshift}, v{v}")
        a(f"v_lshl_add_u32 v{v}, v{vI}, 5, v{v}")
        a(f"v_and_b32 v7, 1, v{vG}")
        a(f"v_lshl_add_u32 v{v}, v7, 4, v{v}")

    def xwave_reduce(self, ACC, T, done):
        a = self.a
        a("v_lshlrev_b32 v4, 4, v0")
        a("s_nop 7")
        a(f"ds_write_b128 v4, {vr(ACC,4)} offset:{LR}")
        a("s_waitcnt lgkmcnt(0)")
        self.barrier()
        self.only_waves_below(1, done)
        a(f"v_lshlrev_b32 v4, 4, v{vLane}")
        for w in range(8):
            a(f"ds_read_b128 {vr(T+4*w,4)}, v4 offset:{LR+1024*w}")
        for w in range(1, 8):
            a(f"s_waitcnt lgkmcnt({7-w})")
            for r in range(4):
                a(f"v_add_f32 v{T+r}, v{T+r}, v{T+4*w+r}")

    def gen(self):
        a = self.a
        name = NAME + "_kernel"
        kernel_begin(a, name)
        a("s_cmp_ge_u32 s2, 256")
        a("s_cbranch_scc1 L_exit")
        self.stamp(0)
        load_ptrs(a)
        if self.transpose:
            a("s_and_b32 s3, s2, 15")
            a("s_lshl_b32 s3, s3, 4")
            a("s_lshr_b32 s2, s2, 4")
            a("s_or_b32 s2, s2, s3")
        a("v_and_b32 v1, 63, v0")
        a("v_lshrrev_b32 v2, 4, v1")
        a("v_and_b32 v3, 15, v0")
        a("v_lshrrev_b32 v4, 6, v0")
        a("s_mov_b32 s6, 0xff00ff00")
        a("s_mov_b32 s7, 0xff00ff00")
        a("v_readfirstlane_b32 s3, v4")
        a(f"s_and_b32 s{sHKV}, s2, 7")
        a(f"s_bfe_u32 s{sB}, s2, 0x10003")
        a(f"s_lshr_b32 s{sS}, s2, 4")
        a(f"s_lshr_b32 s{sJ}, s2, 3")
        a(f"s_mov_b32 s{sL2E}, {LOG2E:#x}")
        a(f"s_mov_b32 s{sSC}, {SCALE:#x}")
        a(f"s_mov_b32 s{sDRY}, 0")
        a(f"s_mov_b32 s{sTO}, 0x200000")
        a(f"s_mov_b32 s{sROLE}, 0")
        a("s_cmp_lt_u32 s2, 120")
        a(f"s_cselect_b32 s{sROLE}, 3, s{sROLE}")
        a("s_cmp_lt_u32 s2, 64")
        a(f"s_cselect_b32 s{sROLE}, 2, s{sROLE}")
        a("s_cmp_lt_u32 s2, 32")
        a(f"s_cselect_b32 s{sROLE}, 1, s{sROLE}")
        a(f"s_and_b32 s{sIDX}, s{sJ}, 3")
        if self.notail: a(f"s_mov_b32 s{sROLE}, 0")
        F_ = self.frag
        a(f"s_mov_b32 s{sM+1}, {(128-F_)*4096:#x}")
        a(f"s_cmp_eq_u32 s{sROLE}, 2")
        a(f"s_cmov_b32 s{sM+1}, {(128-F_-self.dwo)*4096:#x}")
        a(f"s_cmp_eq_u32 s{sROLE}, 3")
        a(f"s_cmov_b32 s{sM+1}, {(128-F_-self.dffn)*4096:#x}")
        a(f"s_lshl_b32 s{sM+2}, s{sS}, 19")
        a(f"s_lshl_b32 s13, s{sB}, 3")
        a(f"s_add_u32 s13, s13, s{sHKV}")
        a(f"s_lshl_b32 s{sM}, s13, 23")
        a("v_and_b32 v5, 3, v3")
        a("v_lshlrev_b32 v5, 10, v5")
        a("v_lshrrev_b32 v6, 2, v3")
        a("v_lshl_add_u32 v5, v6, 8, v5")
        a("v_lshl_add_u32 v5, v2, 4, v5")
        a("v_lshlrev_b32 v6, 8, v2")
        a("v_lshl_add_u32 v6, v3, 4, v6")
        a("s_cmp_ge_u32 s3, 4")
        a("s_cbranch_scc1 L_noprio")
        a("s_setprio 3")
        a.label("L_noprio")
        a(f"s_mov_b32 s{sIDX+1}, s3")
        a(f"v_mov_b32 v{vTa}, {LCNT}")
        a(f"v_mov_b32 v{vT1}, 0x1000")
        a("v_mov_b32 v8, 0")
        a(f"v_mov_b32 v9, {1 if self.noq else 0}")
        a("v_mov_b32 v10, 0")
        a("v_mov_b32 v11, 0")
        a(f"ds_write_b128 v{vTa}, v[8:11]")
        a(f"ds_write_b32 v{vTa}, v10 offset:1040")
        for r in range(4):
            a(f"v_mov_b32 v{12+r}, {EMPTY:#x}")
        a(f"v_lshlrev_b32 v4, 4, v{vLane}")
        a(f"ds_write_b128 v4, v[12:15] offset:{LCH}")
        a("s_waitcnt lgkmcnt(0)")
        a(f"s_load_dword s{sTAG}, s[{P_WS}:{P_WS+1}], {WS_EPOCH}")
        make_srd(a, RX, P_X, 2048)
        X = 8; Y = 16; F = 32
        for rr, p in ((RK, P_K), (RV, P_V)):
            a(f"s_add_u32 s{rr}, s{p}, s{sM}")
            a(f"s_addc_u32 s{rr+1}, s{p+1}, 0")
            a(f"s_and_b32 s{rr+1}, s{rr+1}, 0xffff")
            a(f"s_mov_b32 s{rr+2}, 0x800000")
            a(f"s_mov_b32 s{rr+3}, 0x00020000")
        make_srd(a, RWS, P_WS, 0x400000 if self.stamps else WS_END)
        a(f"s_mov_b32 s20, s{sM+2}")
        a(f"s_mov_b32 s21, s{sM+1}")
        if self.noprod:
            a("s_barrier")
            a("s_branch L_noqld")
        a("s_cmp_lt_u32 s2, 128")
        a("s_cbranch_scc1 L_noprod")
        a("s_cmp_ge_u32 s3, 2")
        a("s_cbranch_scc1 L_noprod")
        make_srd(a, RW1, P_WQ, 512 * 4096 * 2)
        a(f"v_lshlrev_b32 v4, 5, v{vLane}")
        a(f"buffer_load_dwordx4 {vr(X,4)}, v4, {sr(RX,4)}, 0 offen")
        a(f"buffer_load_dwordx4 {vr(X+4,4)}, v4, {sr(RX,4)}, 0 offen offset:16")
        a("v_lshrrev_b32 v4, 3, v3")
        a("v_lshlrev_b32 v4, 10, v4")
        a("v_lshl_add_u32 v4, v2, 5, v4")
        a(f"s_and_b32 s{sJ}, s2, 31")
        a("s_bfe_u32 s13, s2, 0x20005")
        a("s_lshl_b32 s13, s13, 1")
        a(f"s_add_u32 s{sM+2}, s13, s3")
        a(f"s_lshl_b32 s12, s{sM+2}, 7")
        a(f"buffer_load_dwordx4 {vr(Y,4)}, v4, {sr(RX,4)}, s12 offen")
        a(f"buffer_load_dwordx4 {vr(Y+4,4)}, v4, {sr(RX,4)}, s12 offen offset:16")
        a(f"s_lshl_b32 s13, s{sM+2}, 19")
        a(f"s_lshl_b32 s12, s{sJ}, 8")
        a("s_add_u32 s13, s13, s12")
        a("v_lshlrev_b32 v4, 17, v2")
        a("v_lshl_add_u32 v4, v3, 4, v4")
        for t in range(16):
            a(f"buffer_load_dwordx4 {vr(RING+4*t,4)}, v4, {sr(RW1,4)}, s13 offen nt")
            a("s_add_u32 s13, s13, 8192")
        a("s_barrier")
        make_sels(a, SEL, 3, 48, 49, 15)
        if self.qlin:
            a(f"v_lshlrev_b32 v4, 4, v{vLane}")
            a(f"s_lshl_b32 s13, s{sJ}, 14")
            a(f"s_lshl_b32 s12, s{sM+2}, 11")
        else:
            a("v_lshrrev_b32 v4, 1, v2")
            a("v_lshlrev_b32 v4, 13, v4")
            a("v_lshl_add_u32 v4, v3, 6, v4")
            a("v_and_b32 v7, 1, v2")
            a("v_lshl_add_u32 v4, v7, 5, v4")
            a(f"s_lshl_b32 s13, s{sJ}, 14")
            a(f"s_lshl_b32 s12, s{sM+2}, 10")
        a("s_add_u32 s13, s13, s12")
        a(f"s_add_u32 s13, s13, {WS_QP:#x}")
        a("s_waitcnt vmcnt(16)")
        ln_stats(a, X, F, 50, 51, 48, 49, 6)
        ln_apply(a, Y, 8, 50, 51, 48, 49)
        a("s_waitcnt lgkmcnt(0)")
        a(f"s_add_u32 s12, s{sTAG}, {TAGK:#x}")
        for r in range(4):
            a(f"v_mov_b32 v{9+2*r}, s12")
        gemv_mfma(a, Y, 16, RING, SEL, 52, 56, 60, wait=lambda t: a(f"s_waitcnt vmcnt({15-t})"))
        a("s_nop 7")
        for r in range(4):
            a(f"v_mov_b32 v{8+2*r}, v{60+r}")
        a(f"buffer_store_dwordx4 v[8:11], v4, {sr(RWS,4)}, s13 offen sc1")
        a(f"buffer_store_dwordx4 v[12:15], v4, {sr(RWS,4)}, s13 offen offset:{1024 if self.qlin else 16} sc1")
        self.stamp(6)
        a("s_branch L_noqld")
        a.label("L_noprod")
        a("s_barrier")
        a("s_cmp_ge_u32 s2, 32")
        a("s_cbranch_scc1 L_noqld")
        a("s_cmp_ge_u32 s3, 2")
        a(f"s_cbranch_scc1 {'L_qbar2' if self.quiet else 'L_noqld'}")
        if self.qlin:
            a(f"v_lshrrev_b32 v4, 5, v{vLane}")
            a("v_lshlrev_b32 v4, 10, v4")
            a(f"v_and_b32 v7, 31, v{vLane}")
            a("v_lshl_add_u32 v4, v7, 4, v4")
            a("v_add_u32 v42, 0x1000, v4")
            a("s_lshl_b32 s13, s2, 14")
            a("s_lshl_b32 s12, s3, 9")
            a("s_add_u32 s13, s13, s12")
            a(f"s_add_u32 s13, s13, {WS_QP:#x}")
            a("s_add_u32 s12, s13, 0x2000")
            groups = [[(8 + 4 * k, 4, 4 if (k >> 1) % 2 == 0 else 42, "s13" if k < 4 else "s12", (k % 2) * 2048) for k in (2 * i, 2 * i + 1)] for i in range(4)]
        else:
            a(f"v_lshlrev_b32 v4, 4, v{vLane}")
            a("s_lshl_b32 s13, s2, 14")
            a("s_lshl_b32 s12, s3, 13")
            a("s_add_u32 s13, s13, s12")
            a(f"s_add_u32 s13, s13, {WS_QP:#x}")
            a("s_add_u32 s12, s13, 0x1000")
            groups = [[(8 + 4 * k, 4, 4, "s13" if k < 4 else "s12", (k % 4) * 1024) for k in (2 * i, 2 * i + 1)] for i in range(4)]
        a("s_waitcnt lgkmcnt(0)")
        a(f"s_add_u32 s{sTAG}, s{sTAG}, {TAGK:#x}")
        words = [[9 + 8 * i, 11 + 8 * i, 13 + 8 * i, 15 + 8 * i] for i in range(4)]
        self.poll(groups, 40, words=words, tail=False)
        for k in range(1, 8):
            a(f"v_add_f32 v8, v8, v{8+4*k}")
            a(f"v_add_f32 v10, v10, v{10+4*k}")
        if self.qlin:
            a("v_lshlrev_b32 v4, 5, v3")
            a("v_and_b32 v7, 1, v2")
            a("v_lshl_add_u32 v4, v7, 4, v4")
            a("v_lshrrev_b32 v7, 1, v2")
            a("v_lshl_add_u32 v4, v7, 3, v4")
        else:
            a(f"v_lshlrev_b32 v4, 3, v{vLane}")
        a("s_lshl_b32 s13, s3, 14")
        a("s_lshl_b32 s12, s2, 9")
        a("s_add_u32 s13, s13, s12")
        a(f"s_add_u32 s13, s13, {WS_QG:#x}")
        a("v_cvt_pk_bf16_f32 v8, v8, v10")
        a(f"buffer_store_dwordx2 v[8:9], v4, {sr(RWS,4)}, s13 offen sc1")
        a(f"s_sub_u32 s{sTAG}, s{sTAG}, {TAGK:#x}")
        self.stamp(6)
        if self.quiet:
            a.label("L_qbar2")
            a("s_barrier")
        a.label("L_noqld")
        a(f"s_cmp_lg_u32 s{sROLE}, 3")
        a("s_cbranch_scc1 L_idx")
        a(f"s_sub_u32 s{sIDX}, s2, 64")
        a.label("L_idx")
        make_srd(a, ROUT, P_OUT, 2048)
        a(f"s_cmp_lg_u32 s3, {44 if self.noclean else 3}")
        a("s_cbranch_scc1 L_noclean")
        for r in range(4):
            a(f"v_mov_b32 v{8+r}, -1")
        self.ao_addr()
        a(f"v_lshrrev_b32 v4, 5, v{vLane}")
        a("v_lshlrev_b32 v4, 13, v4")
        a(f"v_and_b32 v7, 31, v{vLane}")
        a("v_lshl_add_u32 v4, v7, 4, v4")
        a(f"buffer_store_dwordx4 v[8:11], v4, {sr(RWS,4)}, s13 offen sc1")
        a("s_add_u32 s13, s13, 0x4000")
        a(f"buffer_store_dwordx4 v[8:11], v4, {sr(RWS,4)}, s13 offen sc1")
        a(f"v_and_b32 v4, 3, v{vLane}")
        a("v_lshlrev_b32 v4, 7, v4")
        a(f"buffer_store_dwordx2 v[8:9], v4, {sr(RWS,4)}, s12 offen sc1")
        a(f"s_cmp_eq_u32 s{sROLE}, 2")
        a("s_cbranch_scc0 L_cl_n2")
        self.c_addr(4, 11)
        a(f"s_lshl_b32 s13, s{sHKV}, 12")
        a(f"s_lshl_b32 s12, s{sIDX}, 9")
        a("s_add_u32 s13, s13, s12")
        a(f"s_add_u32 s13, s13, {WS_WP:#x}")
        a(f"buffer_store_dwordx4 v[8:11], v4, {sr(RWS,4)}, s13 offen sc1")
        a.label("L_cl_n2")
        a(f"s_cmp_eq_u32 s{sROLE}, 3")
        a("s_cbranch_scc0 L_cl_n3")
        a(f"v_lshlrev_b32 v4, 4, v{vLane}")
        a(f"s_lshl_b32 s13, s{sIDX}, 12")
        a(f"s_add_u32 s13, s13, {WS_DP:#x}")
        for k in range(4):
            a(f"buffer_store_dwordx4 v[8:11], v4, {sr(RWS,4)}, s13 offen offset:{k*1024} sc1")
        a.label("L_cl_n3")
        a("s_cmp_ge_u32 s2, 16")
        a("s_cbranch_scc1 L_cl_n4")
        a("v_mov_b32 v4, 0")
        a("s_lshl_b32 s13, s2, 8")
        a(f"s_add_u32 s13, s13, {WS_POOL:#x}")
        a(f"buffer_store_dword v4, v4, {sr(RWS,4)}, s13 offen sc1")
        a.label("L_cl_n4")
        a("s_lshl_b32 s13, s2, 2")
        a(f"s_add_u32 s13, s13, {WS_FLAG:#x}")
        a("v_mov_b32 v4, 0")
        a("s_waitcnt vmcnt(0) lgkmcnt(0)")
        a(f"s_add_u32 s12, s{sTAG}, {TAGK:#x}")
        a("v_mov_b32 v8, s12")
        a("s_mov_b64 exec, 1")
        a(f"buffer_store_dword v8, v4, {sr(RWS,4)}, s13 offen sc1")
        a("s_mov_b64 exec, -1")
        a.label("L_noclean")
        if self.stamps:
            a("s_cmp_lt_u32 s3, 2")
            a("s_cbranch_scc1 L_nst6")
            self.stamp(6)
            a.label("L_nst6")
        if self.latew:
            for rr, p, nb in ((RW1, P_WO, 4096 * 512 * 2), (RW2, P_WU, 512 * 1792 * 2), (RWD, P_WD, 1792 * 512 * 2)):
                make_srd(a, rr, p, nb)
            a(f"s_cmp_lg_u32 s{sROLE}, 3")
            a("s_cbranch_scc1 L_ring")
            make_srd(a, RW1, P_WG, 512 * 1792 * 2)
        else:
            self.weights("L_ring", True)
        a.label("L_ring")
        def draw(dst):
            l1 = a.newlabel("L_df"); l2 = a.newlabel("L_dd")
            a("s_mov_b64 exec, 1")
            a(f"ds_add_rtn_u32 v{vTk}, v{vTa}, v{vT1}")
            a("s_mov_b64 exec, -1")
            a("s_waitcnt lgkmcnt(0)")
            a(f"v_readfirstlane_b32 s{dst}, v{vTk}")
            a("s_nop 0")
            a(f"s_cmp_lt_u32 s{dst}, s{sT0}")
            a(f"s_cbranch_scc1 {l1}")
            self.slow(dst, l2)
            a.label(l1)
            a(f"s_add_u32 s{dst}, s{dst}, s{sSLAB}")
            a(f"s_and_b32 s{dst}, s{dst}, 0x7fffff")
            a.label(l2)
        def cdraw(dst, skip):
            top = a.newlabel("L_cd")
            a.label(top)
            a(f"ds_read_b64 v[8:9], v{vTa}")
            a("s_waitcnt lgkmcnt(0)")
            a("v_readfirstlane_b32 s12, v9")
            a(f"v_readfirstlane_b32 s13, v8")
            a(f"v_add_u32 v9, 0x1000, v8")
            a("s_lshl_b32 s12, s12, 31")
            a("s_or_b32 s12, s12, s13")
            a(f"s_cmp_ge_u32 s12, {64*4096:#x}")
            a(f"s_cbranch_scc1 {skip}")
            a("s_mov_b64 exec, 1")
            a(f"ds_cmpst_rtn_b32 v{vTk}, v{vTa}, v8, v9")
            a("s_mov_b64 exec, -1")
            a("s_waitcnt lgkmcnt(0)")
            a(f"v_readfirstlane_b32 s12, v{vTk}")
            a("s_nop 0")
            a("s_cmp_lg_u32 s12, s13")
            a(f"s_cbranch_scc1 {top}")
            a(f"s_add_u32 s{dst}, s13, s{sSLAB}")
            a(f"s_and_b32 s{dst}, s{dst}, 0x7fffff")
        a("s_and_b32 s25, s2, 15")
        a(f"s_mul_i32 s25, s25, {self.rot*4096:#x}")
        a("s_add_u32 s20, s20, s25")
        a(f"s_mov_b32 s{sSLAB}, s20")
        a(f"s_mov_b32 s{sSB}, s21")
        a(f"s_mov_b32 s{sT0}, s21")
        for e in range(3):
            a(f"s_mov_b32 s{sE+e}, -1")
        a(f"s_mov_b32 s{sE+3}, 0")
        a("s_waitcnt lgkmcnt(0)")
        a(f"s_add_u32 s{sTAG}, s{sTAG}, {TAGK:#x}")
        if not self.nopoll:
            a("s_cmp_eq_u32 s3, 2")
            a("s_cbranch_scc1 L_qg")
        a("s_setprio 0")
        a.label("L_ring2")
        a("s_and_b32 s12, s2, 15")
        a("s_lshl_b32 s12, s12, 2")
        a(f"s_add_u32 s12, s12, {WS_FLAG:#x}")
        a("v_mov_b32 v4, 0")
        a(f"v_not_b32 v{vPF}, s{sTAG}")
        for d in range(2):
            ly = a.newlabel("L_y"); lj = a.newlabel("L_j")
            a(f"s_cmp_ge_u32 s3, {8 if self.olddraw & 1 else 7 if self.olddraw & 4 else self.park}")
            a(f"s_cbranch_scc1 {ly}")
            draw(sOF0 + d)
            a(f"s_branch {lj}")
            a.label(ly)
            a(f"s_mov_b32 s{sOF0+d}, {INVALID:#x}")
            cdraw(sOF0 + d, lj)
            a.label(lj)
            self.ldK(d); self.ldV(d)
            self.proghook()
        if not self.latew:
            a(f"s_cmp_ge_u32 s{sROLE}, 2")
            a("s_cbranch_scc1 L_waitq")
        if self.noe_old:
            a(f"s_cmp_lt_u32 s3, {self.park}")
            a("s_cbranch_scc1 L_waitq")
        for e in range(self.ne):
            if self.olddraw & 2:
                a(f"ds_read_b32 v8, v{vTa} offset:4")
                a("s_waitcnt lgkmcnt(0)")
                a("v_readfirstlane_b32 s12, v8")
                a("s_cmp_lg_u32 s12, 0")
                a("s_cbranch_scc1 L_haveq")
                draw(sE + e)
            else:
                cdraw(sE + e, "L_waitq")
            a(f"s_mov_b32 s{sE+3}, 1")
            self.ldK(2 + e); self.ldV(2 + e)
            self.proghook()
        a.label("L_waitq")
        a(f"ds_read_b32 v8, v{vTa} offset:4")
        a("s_waitcnt lgkmcnt(0)")
        a("v_readfirstlane_b32 s12, v8")
        a("s_cmp_lg_u32 s12, 0")
        a("s_cbranch_scc1 L_haveq")
        a(f"s_sub_u32 s{sTO}, s{sTO}, 1")
        a("s_cbranch_scc1 L_exit")
        a("s_sleep 2")
        a("s_branch L_waitq")
        a.label("L_qg")
        a(f"v_lshlrev_b32 v4, 4, v{vLane}")
        a(f"s_lshl_b32 s13, s{sB}, 14")
        a(f"s_lshl_b32 s12, s{sHKV}, 11")
        a("s_add_u32 s13, s13, s12")
        a(f"s_add_u32 s13, s13, {WS_QG:#x}")
        self.poll([[(8, 4, 4, "s13", 0), (12, 4, 4, "s13", 1024)]], 16, words=[[9, 11, 13, 15]], tail=False)
        a("v_mov_b32 v9, v10")
        a("v_mov_b32 v13, v14")
        a(f"v_lshlrev_b32 v4, 3, v{vLane}")
        a(f"ds_write_b64 v4, v[8:9] offset:{LQ}")
        a(f"ds_write_b64 v4, v[12:13] offset:{LQ+512}")
        a("v_mov_b32 v8, 1")
        a("s_waitcnt lgkmcnt(0)")
        a(f"ds_write_b32 v{vTa}, v8 offset:4")
        a("s_setprio 0")
        a("s_branch L_ring2")
        a.label("L_haveq")
        if self.qbar: a("s_barrier")
        self.stamp(1)
        a("v_lshrrev_b32 v4, 2, v3")
        a("v_lshlrev_b32 v4, 8, v4")
        a("v_lshl_add_u32 v4, v2, 4, v4")
        for j in range(4):
            a(f"ds_read_b128 {vr(Q+4*j,4)}, v4 offset:{LQ+j*64}")
        a(f"v_lshlrev_b32 v4, 4, v{vLane}")
        a(f"s_mov_b32 s13, {WS_FLAG:#x}")
        a(f"s_cmp_eq_u32 s{sROLE}, 0")
        a("s_cbranch_scc1 L_nofl")
        a(f"v_not_b32 v{FL}, s{sTAG}")
        a(f"buffer_load_dwordx4 {vr(FL,4)}, v4, {sr(RWS,4)}, s13 offen sc1")
        a.label("L_nofl")
        a("s_and_b32 s12, s2, 15")
        a("s_lshl_b32 s12, s12, 2")
        a(f"s_add_u32 s12, s12, {WS_FLAG:#x}")
        a("v_mov_b32 v4, 0")
        a(f"buffer_load_dword v{vPF}, v4, {sr(RWS,4)}, s12 offen sc1")
        for r in (0, 1, 4, 5, 8, 9, 12, 13, 16, 17):
            a(f"v_mov_b32 v{AW+r}, 0")
        for r in range(8):
            a(f"v_mov_b32 v{O0+r}, 0")
        a(f"v_mov_b32 v{vC}, 0xf149f2ca")
        a(f"v_mov_b32 v{vL}, 0")
        if self.park < 8:
            a("s_mov_b32 s29, 0")
            a(f"s_cmp_lt_u32 s3, {self.park}")
            a("s_cbranch_scc1 L_nopark")
            if self.r2:
                a(f"s_mov_b32 s{sE+3}, 1")
                a(f"s_cmp_lt_u32 s3, {self.r2}")
                a("s_cbranch_scc1 L_nopark")
            a(f"s_mov_b32 s29, {INVALID:#x}")
            a(f"s_mov_b32 s{sT0}, -1")
            a(f"v_mov_b32 v{vT1}, 0")
            if self.sprio:
                a("s_branch L_park2")
            a.label("L_nopark")
            if self.sprio:
                a(f"s_setprio {self.sprio}")
                a.label("L_park2")
        a(f"v_and_b32 v{vT}, 1, v3")
        a(f"v_lshlrev_b32 v{vT}, 4, v{vT}")
        a(f"v_mov_b32 v{vU}, 0xffff")
        a(f"v_lshlrev_b32 v{vU}, v{vT}, v{vU}")
        a(f"v_and_b32 v{vT}, 2, v3")
        a(f"v_cmp_eq_u32 vcc, 0, v{vT}")
        a("s_nop 1")
        a(f"v_cndmask_b32 v{vM0}, 0, v{vU}, vcc")
        a(f"v_cndmask_b32 v{vM1}, v{vU}, 0, vcc")
        a("s_waitcnt lgkmcnt(0)")
        a.raw(".p2align 3")
        a.label("L_loop")
        self.unit(0)
        self.unit(1)
        a(f"s_cmp_eq_u32 s{sE+3}, 0")
        a("s_cbranch_scc1 L_loop")
        a(f"s_waitcnt vmcnt({8*D})")
        a.label("L_edisp")
        if self.r2:
            a(f"s_cmp_lt_u32 s3, {self.park}")
            a("s_cbranch_scc1 L_edisp2")
            a(f"s_mov_b32 s29, {INVALID:#x}")
            a(f"s_mov_b32 s{sT0}, -1")
            a(f"v_mov_b32 v{vT1}, 0")
            a.label("L_edisp2")
        if self.lazye:
            for e in range(1, self.ne):
                a(f"s_cmp_eq_u32 s{sE+3}, {e+1}")
                a(f"s_cbranch_scc1 L_e{e}")
            for e in range(self.ne):
                a.label(f"L_e{e}")
                a(f"s_mov_b32 s{sE+3}, 0")
                self.unit(2 + e)
                if e + 1 < self.ne:
                    a(f"s_mov_b32 s{sE+3}, {e+2}")
                    a("s_cmp_eq_u32 s29, 0")
                    a("s_cbranch_scc1 L_loop")
        else:
            a(f"s_mov_b32 s{sE+3}, 0")
            for e in range(self.ne):
                self.unit(2 + e)
        a("s_branch L_loop")
        for d in range(2):
            a.label(f"L_slow{d}")
            self.slow(sOF0 + d, f"L_back{d}")
        a.label("L_epi")
        a.raw(";TAIL_BEGIN")
        if self.lazye:
            a("s_waitcnt vmcnt(0)")
            a(f"s_cmp_lg_u32 s{sE+3}, 0")
            a("s_cbranch_scc1 L_edisp")
        self.stamp(2)
        xhalf32(a, vL, vU)
        xrow16(a, vL, vU)
        a("s_lshl_b32 s13, s3, 11")
        a("v_lshlrev_b32 v4, 9, v2")
        a("v_lshl_add_u32 v4, v3, 5, v4")
        a("v_add_u32 v4, s13, v4")
        a(f"ds_write_b128 v4, {vr(O0,4)} offset:{LO}")
        a(f"ds_write_b128 v4, {vr(O1,4)} offset:{LO+16}")
        a("v_lshrrev_b32 v4, 2, v3")
        a("v_lshlrev_b32 v4, 5, v4")
        a("s_lshl_b32 s13, s3, 2")
        a("v_add_u32 v4, s13, v4")
        a(f"ds_write_b32 v4, v{vC} offset:{LC}")
        a(f"ds_write_b32 v4, v{vL} offset:{LL}")
        a("v_mov_b32 v8, 1")
        a("s_waitcnt lgkmcnt(0)")
        a("s_mov_b64 exec, 1")
        a(f"ds_add_u32 v{vTa}, v8 offset:12")
        a("s_mov_b64 exec, -1")
        a("s_cmp_lt_u32 s3, 2")
        a("s_cbranch_scc1 L_comb")
        a("s_cmp_lg_u32 s3, 7")
        a("s_cbranch_scc1 L_epi2")
        self.agent()
        a.label("L_epi2")
        a(f"s_cmp_lt_u32 s{sROLE}, 2")
        a("s_cbranch_scc1 L_role")
        a(f"s_cmp_lt_u32 s3, {self.park}")
        a("s_cbranch_scc1 L_role")
        a(f"s_sub_u32 s13, s{sSB}, {self.wlead_wo*4096}")
        a(f"s_cmp_eq_u32 s{sROLE}, 3")
        a(f"s_cbranch_scc0 L_lww")
        a(f"s_sub_u32 s13, s{sSB}, {self.wlead_ffn*4096}")
        a.label("L_lww")
        a(f"ds_read_b96 v[8:10], v{vTa}")
        a(f"s_sub_u32 s{sTO}, s{sTO}, 1")
        a("s_cbranch_scc1 L_exit")
        a("s_sleep 4")
        a("s_waitcnt lgkmcnt(0)")
        a("v_or_b32 v8, v8, v10")
        a("s_nop 0")
        a("v_readfirstlane_b32 s12, v8")
        a("s_cmp_lt_u32 s12, s13")
        a("s_cbranch_scc1 L_lww")
        a("s_branch L_role")
        a.label("L_comb")
        self.ao_addr()
        a.label("L_cw")
        a(f"ds_read_b32 v8, v{vTa} offset:12")
        a(f"s_sub_u32 s{sTO}, s{sTO}, 1")
        a("s_cbranch_scc1 L_exit")
        a("s_waitcnt lgkmcnt(0)")
        a("v_readfirstlane_b32 vcc_lo, v8")
        a("s_cmp_lt_u32 vcc_lo, 8")
        a("s_cbranch_scc1 L_cw")
        self.stamp(4)
        CW = 8; LW = 16; OW = 24; OA = 56
        a("v_bfe_u32 v7, v0, 5, 2")
        a("v_lshlrev_b32 v4, 5, v7")
        for w in range(0, NW, 4):
            a(f"ds_read_b128 {vr(CW+w,4)}, v4 offset:{LC+4*w}")
            a(f"ds_read_b128 {vr(LW+w,4)}, v4 offset:{LL+4*w}")
        a("v_and_b32 v4, 127, v0")
        a("v_lshlrev_b32 v4, 4, v4")
        for w in range(NW):
            a(f"ds_read_b128 {vr(OW+4*w,4)}, v4 offset:{LO+2048*w}")
        a(f"s_waitcnt lgkmcnt({NW})")
        a(f"v_max_f32 v{vC}, v{CW}, v{CW+1}")
        for w in range(2, NW, 2):
            a(f"v_max3_f32 v{vC}, v{vC}, v{CW+w}, v{CW+w+1}")
        for w in range(NW):
            a(f"v_sub_f32 v{CW+w}, v{CW+w}, v{vC}")
        for w in range(NW):
            a(f"v_exp_f32 v{CW+w}, v{CW+w}")
        a("v_lshlrev_b32 v4, 13, v7")
        a(f"v_mul_f32 v{vL}, v{CW}, v{LW}")
        for w in range(1, NW):
            a(f"v_fmac_f32 v{vL}, v{CW+w}, v{LW+w}")
        a("v_and_b32 v62, 31, v0")
        a("v_lshl_add_u32 v4, v62, 4, v4")
        for w in range(NW):
            a(f"s_waitcnt lgkmcnt({NW-1-w})")
            for r in range(4):
                if w == 0: a(f"v_mul_f32 v{OA+r}, v{CW}, v{OW+r}")
                else: a(f"v_fmac_f32 v{OA+r}, v{CW+w}, v{OW+4*w+r}")
        for r in range(4):
            a(f"v_min_u32 v{OA+r}, -2, v{OA+r}")
        a(f"v_min_u32 v{vC}, -2, v{vC}")
        a(f"v_min_u32 v{vL}, -2, v{vL}")
        self.store(OA, 4, 4, "s13")
        a("v_lshlrev_b32 v4, 7, v7")
        self.store(vC, 2, 4, "s12")
        a.label("L_role")
        self.stamp(3)
        a(f"s_cmp_eq_u32 s{sROLE}, 0")
        a("s_cbranch_scc1 L_done")
        if self.latew:
            self.weights("L_nolw2", False)
            a.label("L_nolw2")
        if not self.latew: a("s_waitcnt vmcnt(0)")
        if self.dry:
            l = a.newlabel("L_nw"); self.skip_if_dry(l); a("s_waitcnt vmcnt(0)"); a.label(l)
        self.check_flags()
        a(f"s_cmp_eq_u32 s{sROLE}, 3")
        a("s_cbranch_scc1 L_ffn")
        a(f"s_cmp_eq_u32 s{sROLE}, 1")
        a("s_cbranch_scc1 L_fin")
        P = RING; ML = RING + 32; A = 32; Y = 16
        a("s_lshr_b32 s12, s3, 2")
        a("s_lshl_b32 s12, s12, 5")
        a(f"s_lshl_b32 s13, s{sHKV}, 2")
        a("s_add_u32 s12, s12, s13")
        a("s_and_b32 s13, s3, 3")
        a("s_add_u32 s12, s12, s13")
        a("s_lshl_b32 vcc_hi, s12, 7")
        a(f"s_add_u32 s{sJ}, vcc_hi, {WS_AM:#x}")
        a("s_lshl_b32 s13, s12, 13")
        a(f"s_add_u32 s13, s13, {WS_AO:#x}")
        a("v_lshl_add_u32 v4, v2, 2, v3")
        a("v_and_b32 v4, 15, v4")
        a("v_lshlrev_b32 v4, 3, v4")
        a("v_lshlrev_b32 v7, 11, v2")
        a("v_lshl_add_u32 v7, v3, 4, v7")
        self.barrier()
        self.prepoll(ML, 2, 4, f"s{sJ}", 8, 16)
        groups = [[(P + 8 * i, 4, 7, "s13", 512 * i), (P + 8 * i + 4, 4, 7, "s13", 512 * i + 256)] for i in range(4)]
        groups.append([(ML, 2, 4, f"s{sJ}", 0)])
        (self.poll2 if self.p2 else self.poll)(groups, 8)
        self.stamp(4)
        a(f"v_mov_b32 v50, v{ML}")
        reduce_row16_add(a, 50, "max")
        a(f"v_sub_f32 v50, v{ML}, v50")
        a("v_exp_f32 v50, v50")
        a("s_nop 0")
        a(f"v_mul_f32 v51, v50, v{ML+1}")
        reduce_row16_add(a, 51)
        a("v_rcp_f32 v52, v51")
        a("s_nop 0")
        a("v_fma_f32 v53, -v51, v52, 1.0")
        a("v_fmac_f32 v52, v53, v52")
        a("v_mul_f32 v50, v50, v52")
        a("v_lshrrev_b32 v4, 1, v2")
        a("v_lshlrev_b32 v4, 7, v4")
        for r in range(8):
            a(f"v_mul_f32_dpp v{A+r}, v50, v{P+r} row_newbcast:0 row_mask:0xf bank_mask:0xf")
        for i in range(1, 4):
            for r in range(8):
                a(f"v_fmac_f32_dpp v{A+r}, v50, v{P+8*i+r} row_newbcast:{i} row_mask:0xf bank_mask:0xf")
        a("v_lshl_add_u32 v4, v3, 3, v4")
        a("v_and_b32 v7, 1, v2")
        for r in range(4):
            a(f"v_permlane32_swap_b32 v{A+r}, v{A+4+r}")
        for r in range(4):
            a(f"v_add_f32 v{A+r}, v{A+r}, v{A+4+r}")
        a("v_lshl_add_u32 v4, v7, 2, v4")
        a("s_lshl_b32 s13, s3, 8")
        for r in range(2):
            a(f"v_permlane16_swap_b32 v{A+r}, v{A+2+r}")
        for r in range(2):
            a(f"v_add_f32 v{A+r}, v{A+r}, v{A+2+r}")
        a("v_add_u32 v4, s13, v4")
        a(f"v_cvt_pk_bf16_f32 v{A}, v{A}, v{A+1}")
        a(f"ds_write_b32 v4, v{A} offset:{LX}")
        a("v_lshrrev_b32 v4, 3, v3")
        a("v_lshlrev_b32 v4, 10, v4")
        a("v_lshl_add_u32 v4, v2, 5, v4")
        a("s_lshl_b32 s13, s3, 7")
        a("v_add_u32 v4, s13, v4")
        a("s_waitcnt lgkmcnt(0)")
        self.barrier()
        a(f"ds_read_b128 {vr(Y,4)}, v4 offset:{LX}")
        a(f"ds_read_b128 {vr(Y+4,4)}, v4 offset:{LX+16}")
        a("s_waitcnt lgkmcnt(0)")
        gemv_mfma(a, Y, 16, W, SEL, 52, 56, 60)
        self.xwave_reduce(60, 8, "L_done")
        for r in range(4):
            a(f"v_min_u32 v{8+r}, -2, v{8+r}")
        self.c_addr(4, 11)
        a(f"s_lshl_b32 s13, s{sHKV}, 12")
        a(f"s_lshl_b32 s12, s{sIDX}, 9")
        a("s_add_u32 s13, s13, s12")
        a(f"s_add_u32 s13, s13, {WS_WP:#x}")
        self.store(8, 4, 4, "s13")
        a("s_branch L_done")
        a.label("L_ffn")
        P = RING; X = 8; Y = 16; F = 32
        a("v_lshlrev_b32 v4, 3, v0")
        a("v_lshlrev_b32 v7, 2, v0")
        l = a.newlabel("L_nx")
        self.skip_if_dry(l)
        a(f"buffer_load_dword v{P+16}, v7, {sr(RX,4)}, 0 offen ;POLL")
        a.label(l)
        a(f"s_mov_b32 s13, {WS_WP:#x}")
        a(f"s_mov_b32 s{sJ}, {WS_WP+0x4000:#x}")
        self.barrier()
        a(f"v_and_b32 v8, 7, v{vLane}")
        a("v_lshlrev_b32 v8, 12, v8")
        self.prepoll(P, 1, 8, "s13", 9, 56)
        a("v_add_u32 v69, 0x1000, v4")
        a("v_add_u32 v70, 0x2000, v4")
        a("v_add_u32 v71, 0x3000, v4")
        av = [4, 69, 70, 71]
        groups = [[(P + 2 * k, 2, av[k % 4], "s13" if k < 4 else f"s{sJ}", 0) for k in (2 * i, 2 * i + 1)] for i in range(4)]
        (self.poll2 if self.p2 else self.poll)(groups, 8)
        self.stamp(4)
        a(f"v_add_f32 v8, v{P}, v{P+2}")
        a(f"v_add_f32 v9, v{P+1}, v{P+3}")
        for k in range(2, 8):
            a(f"v_add_f32 v8, v8, v{P+2*k}")
            a(f"v_add_f32 v9, v9, v{P+2*k+1}")
        a("v_cvt_pk_bf16_f32 v8, 0, v8")
        a("v_cvt_pk_bf16_f32 v9, 0, v9")
        a(f"v_lshlrev_b32 v10, 16, v{P+16}")
        a(f"v_and_b32 v11, 0xffff0000, v{P+16}")
        if not self.newln:
            a("v_add_f32 v8, v8, v10")
            a("v_add_f32 v9, v9, v11")
            a("v_cvt_pk_bf16_f32 v8, v8, v9")
            a(f"ds_write_b32 v7, v8 offset:{LX}")
            a(f"v_lshlrev_b32 v7, 5, v{vLane}")
            a("v_lshrrev_b32 v4, 3, v3")
            a("v_lshlrev_b32 v4, 10, v4")
            a("v_lshl_add_u32 v4, v2, 5, v4")
            a("s_lshl_b32 s13, s3, 7")
            a("v_add_u32 v4, s13, v4")
            a("s_waitcnt lgkmcnt(0)")
            self.barrier()
            a(f"ds_read_b128 {vr(X,4)}, v7 offset:{LX}")
            a(f"ds_read_b128 {vr(X+4,4)}, v7 offset:{LX+16}")
            a(f"ds_read_b128 {vr(Y,4)}, v4 offset:{LX}")
            a(f"ds_read_b128 {vr(Y+4,4)}, v4 offset:{LX+16}")
            a("s_waitcnt lgkmcnt(2)")
            ln_stats(a, X, F, 50, 51, 48, 49, 6)
            a("s_waitcnt lgkmcnt(0)")
            ln_apply(a, Y, 8, 50, 51, 48, 49)
        else:
            LS = LA + 256
            a("v_add_f32 v8, v8, v10")
            a("v_add_f32 v9, v9, v11")
            a("v_cvt_pk_bf16_f32 v10, 0, v8")
            a("v_cvt_pk_bf16_f32 v11, 0, v9")
            a("v_cvt_pk_bf16_f32 v8, v8, v9")
            a("v_readfirstlane_b32 s12, v10")
            a(f"ds_write_b32 v7, v8 offset:{LX}")
            a("v_lshrrev_b32 v4, 3, v3")
            a("v_subrev_f32 v10, s12, v10")
            a("v_subrev_f32 v11, s12, v11")
            a("v_add_f32 v12, v10, v11")
            a("v_mul_f32 v13, v10, v10")
            a("v_fmac_f32 v13, v11, v11")
            a("v_lshlrev_b32 v7, 5, v4")
            for ctl in ("quad_perm:[1,0,3,2]", "quad_perm:[2,3,0,1]", "row_half_mirror", "row_mirror"):
                a(f"v_add_f32_dpp v12, v12, v12 {ctl} row_mask:0xf bank_mask:0xf")
                a("s_nop 0")
                a(f"v_add_f32_dpp v13, v13, v13 {ctl} row_mask:0xf bank_mask:0xf")
                if ctl != "row_mirror": a("s_nop 0")
            for op in ("v_permlane16_swap_b32", "v_permlane32_swap_b32"):
                a("v_mov_b32 v14, v12")
                a("v_mov_b32 v15, v13")
                a("s_nop 0")
                a(f"{op} v12, v14")
                a(f"{op} v13, v15")
                a("v_add_f32 v12, v12, v14")
                a("v_add_f32 v13, v13, v15")
            a("v_lshlrev_b32 v4, 10, v4")
            a("v_mul_f32 v14, 0x3c000000, v12")
            a("v_lshl_add_u32 v4, v2, 5, v4")
            a("v_fma_f32 v13, -v14, v12, v13")
            a("v_add_f32 v12, s12, v14")
            a("s_lshl_b32 s13, s3, 3")
            a("v_mov_b32 v14, s13")
            a(f"ds_write_b64 v14, v[12:13] offset:{LS}")
            a("s_lshl_b32 s13, s3, 7")
            a("v_add_u32 v4, s13, v4")
            a("s_waitcnt lgkmcnt(0)")
            self.barrier()
            a(f"ds_read_b128 v[8:11], v7 offset:{LS}")
            a(f"ds_read_b128 v[12:15], v7 offset:{LS+16}")
            a(f"ds_read_b128 {vr(Y,4)}, v4 offset:{LX}")
            a(f"ds_read_b128 {vr(Y+4,4)}, v4 offset:{LX+16}")
            a("s_waitcnt lgkmcnt(2)")
            a("v_add_f32 v50, v8, v10")
            a("v_add_f32 v51, v12, v14")
            a("v_add_f32 v9, v9, v11")
            a("v_add_f32 v50, v50, v51")
            a("v_add_f32 v13, v13, v15")
            a("v_mul_f32 v50, 0.25, v50" if False else "v_mul_f32 v50, 0x3e800000, v50")
            a("v_add_f32 v9, v9, v13")
            for r in (8, 10, 12, 14):
                a(f"v_sub_f32 v{r}, v{r}, v50")
            a("v_mul_f32 v51, v8, v8")
            for r in (10, 12, 14):
                a(f"v_fmac_f32 v51, v{r}, v{r}")
            a("v_mul_f32 v9, 0x3b000000, v9")
            a("v_fmac_f32 v9, 0x3e800000, v51" if False else "v_fmamk_f32 v51, v51, 0x3e800000, v9")
            a("v_cvt_pk_bf16_f32 v50, 0, v50")
            a("v_cvt_pk_bf16_f32 v51, 0, v51")
            a(f"v_add_f32 v51, {EPS:#x}, v51")
            a("v_cvt_pk_bf16_f32 v51, 0, v51")
            a("v_sqrt_f32 v51, v51")
            a("s_nop 0")
            a("v_cvt_pk_bf16_f32 v51, 0, v51")
            a("v_rcp_f32 v51, v51")
            a("s_waitcnt lgkmcnt(0)")
            for j in range(8):
                t = 32 + 2 * (j % 4)
                a(f"v_lshlrev_b32 v{t}, 16, v{Y+j}")
                a(f"v_and_b32 v{t+1}, 0xffff0000, v{Y+j}")
                a(f"v_pk_add_f32 v[{t}:{t+1}], v[{t}:{t+1}], v[50:51] op_sel_hi:[1,0] neg_lo:[0,1] neg_hi:[0,1]")
                a(f"v_cvt_pk_bf16_f32 v{t}, 0, v{t}")
                a(f"v_cvt_pk_bf16_f32 v{t+1}, 0, v{t+1}")
                a(f"v_pk_mul_f32 v[{t}:{t+1}], v[{t}:{t+1}], v[50:51] op_sel:[0,1] op_sel_hi:[1,1]")
                a(f"v_cvt_pk_bf16_f32 v{Y+j}, v{t}, v{t+1}")
        gemv_mfma(a, Y, 16, W, SEL, 52, 56, 60)
        a("v_lshlrev_b32 v4, 4, v0")
        a("s_nop 7")
        a(f"ds_write_b128 v4, {vr(60,4)} offset:{LR}")
        a(f"v_lshrrev_b32 v4, 5, v{vLane}")
        a("v_lshlrev_b32 v4, 9, v4")
        a(f"v_bfe_u32 v7, v{vLane}, 2, 1")
        a("v_lshl_add_u32 v4, v7, 8, v4")
        a(f"v_bfe_u32 v7, v{vLane}, 3, 2")
        a("v_lshl_add_u32 v4, v7, 4, v4")
        a(f"v_and_b32 v7, 3, v{vLane}")
        a("v_lshl_add_u32 v4, v7, 2, v4")
        a("s_waitcnt lgkmcnt(0)")
        self.barrier()
        a("s_cmp_lt_u32 s3, 4")
        a("s_cbranch_scc1 L_done")
        G = 8
        for w in range(8):
            a(f"ds_read_b32 v{G+w}, v4 offset:{LR+1024*w}")
            a(f"ds_read_b32 v{G+8+w}, v4 offset:{LR+1024*w+64}")
        a("s_lshl_b32 s12, s3, 7")
        a(f"v_lshl_add_u32 v4, v{vLane}, 1, s12")
        a("v_lshrrev_b32 v31, 3, v3")
        a("v_lshlrev_b32 v31, 6, v31")
        a("v_lshl_add_u32 v31, v2, 4, v31")
        a("v_add_u32 v31, s12, v31")
        for w in range(1, 8):
            a(f"s_waitcnt lgkmcnt({14-2*w})")
            a(f"v_add_f32 v{G}, v{G}, v{G+w}")
            a(f"v_add_f32 v{G+8}, v{G+8}, v{G+8+w}")
        a(f"v_cvt_pk_bf16_f32 v{G}, 0, v{G}")
        a(f"v_cvt_pk_bf16_f32 v{G+8}, 0, v{G+8}")
        a(f"v_mul_f32 v{G+1}, 0xbfb8aa3b, v{G}")
        a(f"v_exp_f32 v{G+1}, v{G+1}")
        a("s_nop 0")
        a(f"v_add_f32 v{G+1}, 1.0, v{G+1}")
        a(f"v_rcp_f32 v{G+2}, v{G+1}")
        a("s_nop 0")
        a(f"v_mul_f32 v{G+3}, v{G}, v{G+2}")
        a(f"v_fma_f32 v{G+4}, -v{G+3}, v{G+1}, v{G}")
        a(f"v_fmac_f32 v{G+3}, v{G+4}, v{G+2}")
        a(f"v_cvt_pk_bf16_f32 v{G+3}, 0, v{G+3}")
        a(f"v_mul_f32 v{G+3}, v{G+3}, v{G+8}")
        a(f"v_cvt_pk_bf16_f32 v{G+3}, v{G+3}, v{G+3}")
        a(f"ds_write_b16 v4, v{G+3} offset:{LX-512}")
        self.c_addr(4, 11)
        a(f"s_lshl_b32 s13, s{sIDX}, 12")
        a("s_and_b32 s12, s3, 3")
        a("s_lshl_b32 s12, s12, 9")
        a("s_add_u32 s13, s13, s12")
        a(f"s_add_u32 s13, s13, {WS_DP:#x}")
        a("s_waitcnt lgkmcnt(0)")
        a(f"ds_read_b128 {vr(Y,4)}, v31 offset:{LX-512}")
        a("s_waitcnt lgkmcnt(0)")
        gemv_mfma(a, Y, 8, WD, SEL, 52, 56, 60)
        a("s_nop 7")
        for r in range(4):
            a(f"v_min_u32 v{60+r}, -2, v{60+r}")
        self.store(60, 4, 4, "s13")
        a("s_branch L_done")
        a.label("L_fin")
        self.only_waves_below(1, "L_done")
        P = RING; H = 8
        a(f"v_and_b32 v7, 7, v{vLane}")
        a("v_lshlrev_b32 v4, 4, v7")
        a("v_add_u32 v69, 0x1000, v4")
        a("v_add_u32 v70, 0x2000, v4")
        a("v_add_u32 v71, 0x3000, v4")
        a("v_lshlrev_b32 v7, 3, v7")
        a("s_lshl_b32 s12, s2, 6")
        l = a.newlabel("L_nx")
        self.skip_if_dry(l)
        a(f"buffer_load_dwordx2 {vr(P+60,2)}, v7, {sr(RX,4)}, s12 offen ;POLL")
        a.label(l)
        a("s_lshl_b32 s12, s2, 7")
        a(f"s_add_u32 s13, s12, {WS_WP:#x}")
        a(f"s_add_u32 s{sJ}, s12, {WS_WP+0x4000:#x}")
        groups = [[(P + 4 * k, 4, av[k % 4], "s13" if k < 4 else f"s{sJ}", 0) for k in (2 * i, 2 * i + 1)] for i in range(4)]
        self.poll(groups, 8, gate="sleep")
        for r in range(4):
            a(f"v_add_f32 v{H+r}, v{P+r}, v{P+4+r}")
        for k in range(2, 8):
            for r in range(4):
                a(f"v_add_f32 v{H+r}, v{H+r}, v{P+4*k+r}")
        for r in range(4):
            a(f"v_cvt_pk_bf16_f32 v{H+r}, 0, v{H+r}")
        a(f"v_lshlrev_b32 v12, 16, v{P+60}")
        a(f"v_and_b32 v13, 0xffff0000, v{P+60}")
        a(f"v_lshlrev_b32 v14, 16, v{P+61}")
        a(f"v_and_b32 v15, 0xffff0000, v{P+61}")
        for r in range(4):
            a(f"v_add_f32 v{H+r}, v{H+r}, v{12+r}")
        for r in range(4):
            a(f"v_cvt_pk_bf16_f32 v{H+r}, 0, v{H+r}")
        a(f"v_lshrrev_b32 v16, 3, v{vLane}")
        a("v_lshl_add_u32 v4, v16, 12, v4")
        for k in range(1, 4):
            a(f"v_add_u32 v{68+k}, {0x8000*k:#x}, v4")
        a("s_lshl_b32 s12, s2, 7")
        a(f"s_add_u32 s13, s12, {WS_DP:#x}")
        a(f"s_add_u32 s{sJ}, s13, 0x20000")
        groups = [[(P + 4 * k, 4, av[k % 4], "s13" if k < 4 else f"s{sJ}", 0) for k in range(2 * i, min(2 * i + 2, 7))] for i in range(4)]
        (self.poll2 if self.p2 else self.poll)(groups, 16)
        self.stamp(4)
        T = 12
        for r in range(4):
            a(f"v_add_f32 v{T+r}, v{P+r}, v{P+4+r}")
        for k in range(2, 7):
            for r in range(4):
                a(f"v_add_f32 v{T+r}, v{T+r}, v{P+4*k+r}")
        a("s_nop 1")
        for r in range(4):
            a(f"v_add_f32_dpp v{T+r}, v{T+r}, v{T+r} row_ror:8 row_mask:0xf bank_mask:0xf")
        for r in range(4):
            a(f"v_mov_b32 v{T+4+r}, v{T+r}")
        a("s_nop 0")
        for r in range(4):
            a(f"v_permlane16_swap_b32 v{T+r}, v{T+4+r}")
        for r in range(4):
            a(f"v_add_f32 v{T+r}, v{T+r}, v{T+4+r}")
        for r in range(4):
            a(f"v_mov_b32 v{T+4+r}, v{T+r}")
        a("s_nop 0")
        for r in range(4):
            a(f"v_permlane32_swap_b32 v{T+r}, v{T+4+r}")
        for r in range(4):
            a(f"v_add_f32 v{T+r}, v{T+r}, v{T+4+r}")
        for r in range(4):
            a(f"v_cvt_pk_bf16_f32 v{T+r}, 0, v{T+r}")
        for r in range(4):
            a(f"v_add_f32 v{H+r}, v{H+r}, v{T+r}")
        if self.pert:
            import struct
            el, dv = self.pert.split(":")
            bits = struct.unpack("<I", struct.pack("<f", float(dv)))[0]
            a("s_cmp_lg_u32 s2, 0")
            a("s_cbranch_scc1 L_nopert")
            a("s_mov_b64 exec, 1")
            a(f"v_add_f32 v{H+int(el)}, {bits:#x}, v{H+int(el)}")
            a("s_mov_b64 exec, -1")
            a.label("L_nopert")
        a(f"v_cvt_pk_bf16_f32 v{H}, v{H}, v{H+1}")
        a(f"v_cvt_pk_bf16_f32 v{H+1}, v{H+2}, v{H+3}")
        a("s_lshl_b32 s12, s2, 6")
        a("s_mov_b64 exec, 0xff")
        self.store(H, 2, 7, "s12", srd=ROUT, flags="")
        a("s_cmp_lg_u32 s2, 0")
        a("s_cbranch_scc1 L_noep")
        a(f"v_mov_b32 v8, s{sTAG}")
        a("v_mov_b32 v4, 0")
        a("s_mov_b64 exec, 1")
        self.store(8, 1, 4, "0", imm=WS_EPOCH, flags="")
        a.label("L_noep")
        a("s_mov_b64 exec, -1")
        a.label("L_done")
        a.raw(";TAIL_END")
        if self.dry:
            a(f"s_cmp_eq_u32 s{sDRY}, 1")
            a("s_cbranch_scc1 L_dryend")
        if self.stamps:
            self.stamp(5)
            a("s_getreg_b32 s12, hwreg(HW_REG_XCC_ID)")
            a("s_waitcnt lgkmcnt(0)")
            a(f"v_mov_b32 v8, s{sST+12}")
            a(f"v_mov_b32 v9, s{sST+2}")
            a(f"v_mov_b32 v10, s{sST+4}")
            a(f"v_mov_b32 v11, s{sST+8}")
            a("v_mov_b32 v4, 0")
            a("s_lshl_b32 s13, s2, 3")
            a("s_add_u32 s13, s13, s3")
            a("s_lshl_b32 s13, s13, 4")
            a(f"s_add_u32 s13, s13, {STAMP+0x8000:#x}")
            a("s_mov_b64 exec, 1")
            a(f"buffer_store_dwordx4 v[8:11], v4, {sr(RWS,4)}, s13 offen")
            a("s_mov_b64 exec, -1")
            a("s_cmp_lg_u32 s3, 1")
            a("s_cbranch_scc1 L_st0")
            a(f"v_mov_b32 v8, s{sST+12}")
            a(f"v_mov_b32 v9, s{sST+4}")
            a("v_mov_b32 v4, 0")
            a("s_lshl_b32 s13, s2, 3")
            a(f"s_add_u32 s13, s13, {STAMP+0x4000:#x}")
            a("s_mov_b64 exec, 1")
            a(f"buffer_store_dwordx2 v[8:9], v4, {sr(RWS,4)}, s13 offen")
            a.label("L_st0")
            a("s_cmp_lg_u32 s3, 0")
            a("s_cbranch_scc1 L_exit")
            for k in range(6):
                a(f"v_mov_b32 v{8+k}, s{sST+2*k}")
            a("v_mov_b32 v14, s12")
            a(f"v_mov_b32 v15, s{sROLE}")
            a("v_mov_b32 v4, 0")
            a("s_lshl_b32 s13, s2, 5")
            a(f"s_add_u32 s13, s13, {STAMP:#x}")
            a("s_mov_b64 exec, 1")
            a(f"buffer_store_dwordx4 v[8:11], v4, {sr(RWS,4)}, s13 offen")
            a(f"buffer_store_dwordx4 v[12:15], v4, {sr(RWS,4)}, s13 offen offset:16")
        if self.dbgst:
            make_srd(a, RW1, P_DBG, 256)
            a("s_mov_b64 exec, 1")
            for wg, base, ks in ((0, 0, (0, 1, 2, 3, 4, 5)), (40, 6, (3, 4, 5)), (70, 9, (3, 4, 5)), (200, 12, (0, 1, 2, 3))):
                l = a.newlabel("L_dg")
                a(f"s_cmp_lg_u32 s2, {wg}")
                a(f"s_cbranch_scc1 {l}")
                for i, k in enumerate(ks):
                    a(f"v_mov_b32 v8, s{sST+2*k}")
                    a(f"v_mov_b32 v4, {4*(base+i)}")
                    a(f"buffer_store_dword v8, v4, {sr(RW1,4)}, 0 offen")
                    a("s_nop 1")
                a.label(l)
        a.label("L_exit")
        a("s_endpgm")
        pass
        out = HEADER + f"; @launch grid=(256,1,1) block=(512,1,1) lds={LDS_BYTES}\n"
        out += '.amdgcn_target "amdgcn-amd-amdhsa--gfx950"\n.text\n' + a.text()
        out += '.section .rodata,"a"\n' + kernel_desc(name, NVGPR)
        return out

    def check_tail(self):
        on = False
        for ln in self.a.lines:
            if ln.startswith(";TAIL_BEGIN"): on = True; continue
            if ln.startswith(";TAIL_END"): on = False; continue
            if not on or ";POLL" in ln: continue
            s = ln.strip()
            m = re.match(r"(v_\w+|ds_read\w+|buffer_load\w+)\s+(v\[(\d+):(\d+)\]|v(\d+))", s)
            if not m or s.startswith("v_cmp"): continue
            regs = [int(m.group(5))] if m.group(5) else list(range(int(m.group(3)), int(m.group(4)) + 1))
            if "swap" in s:
                regs.append(int(re.findall(r"v(\d+)", s.split(",")[1])[0]))
            for r in regs:
                assert r in (4, 7) or 8 <= r <= 71, f"tail writes v{r}: {s}"

if __name__ == "__main__":
    import argparse
    ap = argparse.ArgumentParser()
    ap.add_argument("-o", default="fused.s")
    ap.add_argument("--stamps", action="store_true")
    ap.add_argument("--nodry", action="store_true")
    ap.add_argument("--pace", action="store_true")
    ap.add_argument("--qfirst", type=int, default=2)
    ap.add_argument("--ne", type=int, default=3)
    ap.add_argument("--pd", type=int, default=1)
    ap.add_argument("--notail", action="store_true")
    ap.add_argument("--noq", action="store_true")
    ap.add_argument("--qbar", action="store_true")
    ap.add_argument("--prog", action="store_true")
    ap.add_argument("--nopoll", action="store_true")
    ap.add_argument("--noprod", action="store_true")
    ap.add_argument("--noclean", action="store_true")
    ap.add_argument("--qsleep", type=int, default=0)
    ap.add_argument("--pool", type=int, default=256)
    ap.add_argument("--look", type=int, default=8)
    ap.add_argument("--chunk", type=int, default=4)
    ap.add_argument("--notr", action="store_true")
    ap.add_argument("--rot", type=int, default=0)
    ap.add_argument("--pert", default=None)
    ap.add_argument("--dbgst", action="store_true")
    ap.add_argument("--park", type=int, default=4)
    ap.add_argument("--olddraw", type=int, default=0)
    ap.add_argument("--lazye", action="store_true")
    ap.add_argument("--noe_old", action="store_true")
    ap.add_argument("--sprio", type=int, default=0)
    ap.add_argument("--frag", type=int, default=4)
    ap.add_argument("--p2", action="store_true")
    ap.add_argument("--oldln", action="store_true")
    ap.add_argument("--pslp", type=int, default=4)
    ap.add_argument("--quiet", action="store_true")
    ap.add_argument("--earlyw", action="store_true")
    ap.add_argument("--rolepool", type=int, default=1)
    ap.add_argument("--wlwo", type=int, default=8)
    ap.add_argument("--wlffn", type=int, default=-100)
    ap.add_argument("--progdone", action="store_true")
    ap.add_argument("--r2", type=int, default=0)
    ap.add_argument("--noqlin", action="store_true")
    ap.add_argument("--dwo", type=int, default=16)
    ap.add_argument("--dffn", type=int, default=0)
    x = ap.parse_args()
    open(x.o, "w").write(Gen(stamps=x.stamps, dry=False, pace=x.pace, qfirst=x.qfirst, ne=x.ne, pd=x.pd, notail=x.notail, noq=x.noq, qbar=x.qbar, prog=x.prog, nopoll=x.nopoll, noprod=x.noprod, noclean=x.noclean, qsleep=x.qsleep, pool=x.pool, look=x.look, chunk=x.chunk, rot=x.rot, pert=x.pert, dbgst=x.dbgst, park=x.park, olddraw=x.olddraw, lazye=x.lazye, sprio=x.sprio, noe_old=x.noe_old, frag=x.frag, p2=x.p2, pslp=x.pslp, newln=not x.oldln, quiet=x.quiet, latew=not x.earlyw, rolepool=x.rolepool, wlead_wo=x.wlwo, wlead_ffn=x.wlffn, progdone=x.progdone, r2=x.r2, qlin=not x.noqlin, transpose=not x.notr, dwo=x.dwo, dffn=x.dffn).gen())
```
